```python
import torch

def _softmax(x, axis=-1):
    return torch.softmax(x, dim=axis)
def _gelu(x):
    return torch.nn.functional.gelu(x, approximate="tanh")
def _silu(x):
    return torch.nn.functional.silu(x)
def _sigmoid(x):
    return torch.sigmoid(x)
def _layernorm(x, axis=-1, eps=1e-5):
    m = x.mean(dim=axis, keepdim=True)
    v = x.var(dim=axis, keepdim=True, unbiased=False)
    return (x - m) / torch.sqrt(v + eps)
def _scatter_add(tgt, idx, src, axis=0):
    return tgt.clone().index_add_(axis, idx, src)
def _segment_sum(src, seg, n):
    out = torch.zeros((n,) + src.shape[1:], dtype=src.dtype)
    return out.index_add_(0, seg, src)
def _pad(x, pw):
    flat = tuple(v for pair in reversed(pw) for v in pair)
    return torch.nn.functional.pad(x, flat)

kernel_name = 'standalone__molecular_angular_gemnet__graph'

def setup_inputs():

    _w = (lambda a: (lambda t: t.to(torch.bfloat16) if t.is_floating_point() else t)(torch.as_tensor(a)))
    N, deg, De, L = 50000, 16, 4, 1
    E = N * deg
    T = E * deg
    NR = 8
    dist = torch.rand(E).to(float)
    angle = (torch.rand(T) * torch.pi).to(float)
    centers = torch.linspace(0.0, 1.0, NR).to(float)
    ang_freq = torch.arange(1, L + 1).to(float)
    return {
        "m": _w((lambda *s: torch.randn(*s, dtype=torch.bfloat16) * 0.05)(E, De)),
        "idx_in": _w((lambda lo, hi, *s: torch.randint(lo, hi, s))(0, E, T).to(torch.int64)),
        "idx_out": _w((lambda lo, hi, *s: torch.randint(lo, hi, s))(0, E, T).to(torch.int64)),
        "dist": _w(dist),
        "angle": _w(angle),
        "centers": _w(centers),
        "ang_freq": _w(ang_freq),
        "w_rbf": _w((lambda *s: torch.randn(*s, dtype=torch.bfloat16) * 0.4)(NR, De)),
        "w_sbf": _w((lambda *s: torch.randn(*s, dtype=torch.bfloat16) * 0.4)(NR * L, De)),
        "w_down": _w((lambda *s: torch.randn(*s, dtype=torch.bfloat16) * 0.4)(De, De)),
        "w_up": _w((lambda *s: torch.randn(*s, dtype=torch.bfloat16) * 0.4)(De, De)),
    }

def reference(m, idx_in, idx_out, dist, angle, centers, ang_freq, w_rbf, w_sbf, w_down, w_up):
    E, De = m.shape[0], m.shape[1]
    NR = centers.shape[0]
    L = ang_freq.shape[0]
    rbf = torch.exp(-10.0 * (dist[:, None] - centers[None, :]) ** 2)
    cbf = torch.cos(ang_freq[None, :] * angle[:, None])
    rbf_t = rbf[idx_out]
    sbf = torch.reshape(rbf_t[:, :, None] * cbf[:, None, :], (-1, NR * L))
    x = (m[idx_in] @ w_down) * (sbf @ w_sbf)
    agg = _segment_sum(x, idx_out, E)
    return m + (agg @ w_up) * (rbf @ w_rbf)
```

```python
NAME = "standalone__molecular_angular_gemnet__graph"
E = 800000
T = 12800000

HEADER = """; Kernarg layout for this problem (112 bytes, ptrs only, base s[0:1]):
"""

def kd(name, vgpr, sgpr):
    acc = (vgpr + 3) // 4 * 4
    return f""".amdhsa_kernel {name}
  .amdhsa_next_free_vgpr {vgpr}
  .amdhsa_next_free_sgpr {sgpr}
  .amdhsa_accum_offset {acc}
  .amdhsa_group_segment_fixed_size 0
  .amdhsa_kernarg_size 112
  .amdhsa_user_sgpr_count 2
  .amdhsa_user_sgpr_kernarg_segment_ptr 1
  .amdhsa_system_sgpr_workgroup_id_x 1
  .amdhsa_float_denorm_mode_32 3
.end_amdhsa_kernel
"""

def kstart(name):
    return f""".globl {name}
.p2align 8
.type {name},@function
{name}:
"""

def srd(d, b, nbytes):
    s = ""
    if d != b:
        s += f"    s_mov_b32 s{d}, s{b}\n    s_mov_b32 s{d+1}, s{b+1}\n"
    s += f"    s_mov_b32 s{d+2}, {nbytes}\n    s_mov_b32 s{d+3}, 0x00020000\n"
    return s
```

```python
from common import *
import sys
extra = sys.argv[1] if len(sys.argv) > 1 else ""
o = []
w = o.append
w(HEADER)
launches = []
if extra == "rd":
    launches.append("; @launch kernel=rd_kernel grid=(2000,1,1) block=(256,1,1) lds=0")
launches += ["; @launch kernel=zero_kernel grid=(3125,1,1) block=(256,1,1) lds=0",
 "; @launch kernel=scat_kernel grid=(50000,1,1) block=(256,1,1) lds=0",
 "; @launch kernel=epi_kernel grid=(3125,1,1) block=(256,1,1) lds=0"]
w("\n".join(launches) + "\n")
w('.amdgcn_target "amdgcn-amd-amdhsa--gfx950"\n.text\n')

w(kstart("zero_kernel"))
w("""    s_load_dwordx2 s[4:5], s[0:1], 104
    s_lshl_b32 s3, s2, 12
    v_lshl_add_u32 v1, v0, 4, s3
    v_mov_b32 v4, 0
    v_mov_b32 v5, 0
    v_mov_b32 v6, 0
    v_mov_b32 v7, 0
    s_waitcnt lgkmcnt(0)
""" + srd(4, 4, E*16) + """    buffer_store_dwordx4 v[4:7], v1, s[4:7], 0 offen
    s_endpgm
""")

w(kstart("scat_kernel"))
w(f"""    s_cmp_ge_u32 s2, 50000
    s_cbranch_scc1 scat_done
    s_load_dwordx4 s[4:7], s[0:1], 0        ; m, idx_in
    s_load_dwordx2 s[8:9], s[0:1], 16       ; idx_out
    s_load_dwordx2 s[10:11], s[0:1], 32     ; angle
    s_load_dwordx2 s[12:13], s[0:1], 48     ; ang_freq
    s_load_dwordx2 s[14:15], s[0:1], 104    ; ws
    s_lshl_b32 s3, s2, 8
    v_add_u32 v1, s3, v0
    v_lshlrev_b32 v2, 2, v1
    v_lshlrev_b32 v3, 1, v1
    v_mov_b32 v20, 0
    s_waitcnt lgkmcnt(0)
    global_load_ushort v9, v20, s[12:13]
    global_load_dword v4, v2, s[6:7]
    global_load_dword v5, v2, s[8:9]
    global_load_ushort v6, v3, s[10:11]
""" + srd(16, 4, E*8) + srd(20, 14, E*16) + f"""    s_waitcnt vmcnt(2)
    v_lshlrev_b32 v4, 3, v4
    buffer_load_dwordx2 v[10:11], v4, s[16:19], 0 offen
    s_waitcnt vmcnt(1)
    v_lshlrev_b32 v9, 16, v9
    v_lshlrev_b32 v6, 16, v6
    v_mul_f32 v6, v9, v6
    v_cvt_pk_bf16_f32 v6, v6, v6
    v_lshlrev_b32 v6, 16, v6
    v_mul_f32 v6, 0.15915494, v6
    v_fract_f32 v6, v6
    v_cos_f32 v6, v6
    s_nop 0
    v_cvt_pk_bf16_f32 v6, v6, v6
    v_lshlrev_b32 v6, 16, v6
    v_lshlrev_b32 v5, 4, v5
    s_waitcnt vmcnt(0)
    v_lshlrev_b32 v12, 16, v10
    v_and_b32 v13, 0xffff0000, v10
    v_lshlrev_b32 v14, 16, v11
    v_and_b32 v15, 0xffff0000, v11
    v_mul_f32 v12, v6, v12
    v_mul_f32 v13, v6, v13
    v_mul_f32 v14, v6, v14
    v_mul_f32 v15, v6, v15
    buffer_atomic_add_f32 v12, v5, s[20:23], 0 offen
    buffer_atomic_add_f32 v13, v5, s[20:23], 0 offen offset:4
    buffer_atomic_add_f32 v14, v5, s[20:23], 0 offen offset:8
    buffer_atomic_add_f32 v15, v5, s[20:23], 0 offen offset:12
scat_done:
    s_endpgm
""")

def rnd(v):
    return f"    v_cvt_pk_bf16_f32 v{v}, v{v}, v{v}\n    v_lshlrev_b32 v{v}, 16, v{v}\n"

w(kstart("epi_kernel"))
w(f"""    s_load_dwordx2 s[4:5], s[0:1], 0        ; m
    s_load_dwordx2 s[8:9], s[0:1], 24       ; dist
    s_load_dwordx2 s[12:13], s[0:1], 88     ; out
    s_load_dwordx2 s[16:17], s[0:1], 104    ; ws
    s_load_dwordx2 s[20:21], s[0:1], 40     ; centers
    s_load_dwordx8 s[24:31], s[0:1], 56     ; w_rbf w_sbf w_down w_up
    s_lshl_b32 s3, s2, 8
    v_add_u32 v1, s3, v0
    s_waitcnt lgkmcnt(0)
    s_load_dwordx4 s[32:35], s[20:21], 0    ; centers
    s_load_dwordx16 s[36:51], s[24:25], 0   ; w_rbf
    s_load_dwordx16 s[52:67], s[26:27], 0   ; w_sbf
    s_load_dwordx8 s[68:75], s[28:29], 0    ; w_down
    s_load_dwordx8 s[76:83], s[30:31], 0    ; w_up
""" + srd(4,4,E*8) + srd(8,8,E*2) + srd(12,12,E*8) + srd(16,16,E*16) + """    v_lshlrev_b32 v2, 1, v1
    v_lshlrev_b32 v3, 3, v1
    v_lshlrev_b32 v4, 4, v1
    buffer_load_ushort v5, v2, s[8:11], 0 offen
    buffer_load_dwordx2 v[6:7], v3, s[4:7], 0 offen
    buffer_load_dwordx4 v[8:11], v4, s[16:19], 0 offen
    s_waitcnt vmcnt(2) lgkmcnt(0)
    v_lshlrev_b32 v5, 16, v5
""")
def sw(base, idx):
    r = base + idx // 2
    if idx % 2 == 0:
        return f"    s_lshl_b32 s90, s{r}, 16\n"
    return f"    s_and_b32 s90, s{r}, 0xffff0000\n"
for r in range(8):
    v = 12 + r
    w(sw(32, r))
    w(f"    v_subrev_f32 v{v}, s90, v5\n" + rnd(v) + f"    v_mul_f32 v{v}, v{v}, v{v}\n" + rnd(v))
    w(f"    v_mul_f32 v{v}, 0xc1200000, v{v}\n" + rnd(v))
    w(f"    v_mul_f32 v{v}, 0x3fb8aa3b, v{v}\n    v_exp_f32 v{v}, v{v}\n    s_nop 0\n" + rnd(v))
for j in range(4):
    for r in range(8):
        w(sw(36, r*4+j))
        w(f"    v_mul_f32 v{20+j}, s90, v{12+r}\n" if r == 0 else f"    v_fmac_f32 v{20+j}, s90, v{12+r}\n")
        w(sw(52, r*4+j))
        w(f"    v_mul_f32 v{24+j}, s90, v{12+r}\n" if r == 0 else f"    v_fmac_f32 v{24+j}, s90, v{12+r}\n")
    w(rnd(20+j))
w("    s_waitcnt vmcnt(0)\n")
for j in range(4):
    for i in range(4):
        w(sw(68, i*4+j))
        w(f"    v_mul_f32 v{28+j}, s90, v{8+i}\n" if i == 0 else f"    v_fmac_f32 v{28+j}, s90, v{8+i}\n")
    w(f"    v_mul_f32 v{28+j}, v{28+j}, v{24+j}\n" + rnd(28+j))
for k in range(4):
    for j in range(4):
        w(sw(76, j*4+k))
        w(f"    v_mul_f32 v{32+k}, s90, v{28+j}\n" if j == 0 else f"    v_fmac_f32 v{32+k}, s90, v{28+j}\n")
    w(rnd(32+k) + f"    v_mul_f32 v{32+k}, v{32+k}, v{20+k}\n" + rnd(32+k))
w("""    v_lshlrev_b32 v12, 16, v6
    v_and_b32 v13, 0xffff0000, v6
    v_lshlrev_b32 v14, 16, v7
    v_and_b32 v15, 0xffff0000, v7
    v_add_f32 v12, v12, v32
    v_add_f32 v13, v13, v33
    v_add_f32 v14, v14, v34
    v_add_f32 v15, v15, v35
    v_cvt_pk_bf16_f32 v12, v12, v13
    v_cvt_pk_bf16_f32 v13, v14, v15
    buffer_store_dwordx2 v[12:13], v3, s[12:15], 0 offen
    s_endpgm
""")
w('.section .rodata,"a"\n.p2align 6\n')
w(kd("zero_kernel", 8, 16)); w(".p2align 6\n")
w(kd("scat_kernel", 24, 32)); w(".p2align 6\n")
w(kd("epi_kernel", 40, 96))
print("".join(o))
```

```python
from common import *
import sys

class Asm:
    def __init__(self):
        self.o = []
        self.vm = []
    def __call__(self, s):
        for line in s.strip("\n").split("\n"):
            line = line.strip()
            if not line: continue
            if line.endswith(":"): self.o.append(line)
            else: self.o.append("    " + line)
    def raw(self, s): self.o.append(s.rstrip("\n"))
    def vmem(self, s, tag):
        self(s); self.vm.append(tag)
    def waitvm(self, tag, extra=""):
        idx = max(i for i, t in enumerate(self.vm) if t == tag)
        n = len(self.vm) - 1 - idx
        assert n <= 63
        self(f"s_waitcnt vmcnt({n}) {extra}".rstrip())
        self.vm = self.vm[idx + 1:]
    def text(self): return "\n".join(self.o) + "\n"

def vr(a, n): return f"v[{a}:{a+n-1}]"
def sr(a, n): return f"s[{a}:{a+n-1}]"

NW1   = 250
TPW   = 4
TILE  = 12800
S1    = TILE * 6 + 256 * 6
NT1   = NW1 * TPW
REC1  = 0
REC1_SZ = NT1 * S1
DIR1  = (REC1_SZ + 0xFFFFF) & ~0xFFFFF
DIR2  = DIR1 + (1 << 20)
SCAL  = DIR2 + (1 << 20)
CB2   = 104
S2    = (CB2 * 128 + 256) * 8
REC2  = SCAL + (1 << 20)
REC2_SZ = 1024 * S2
assert REC2 + REC2_SZ <= 268435456
DUMMY_CHUNK = 49
LDPOL = " nt"
STPOL = " sc1"
RDPOL = ""

def wave_scan(e, v, op="v_add_u32"):
    for sh in (1, 2, 4, 8):
        e(f"s_nop 1\n{op}_dpp v{v}, v{v}, v{v} row_shr:{sh} row_mask:0xf bank_mask:0xf")
    e(f"s_nop 1\n{op}_dpp v{v}, v{v}, v{v} row_bcast:15 row_mask:0xa bank_mask:0xf")
    e(f"s_nop 1\n{op}_dpp v{v}, v{v}, v{v} row_bcast:31 row_mask:0xc bank_mask:0xf")

def add64(e, d, b, off):
    e(f"s_add_u32 s{d}, s{b}, {off}\ns_addc_u32 s{d+1}, s{b+1}, 0")

K1_CNT = (0, 1024); K1_BASE = 2048; K1_BUF = 3072; K1_LDS = K1_BUF + S1

def gen_k1():
    e = Asm()
    e.raw(kstart("k1_kernel"))
    vA, vB, vC, vD, vL16, vSix, vFreq, vRd2 = 1, 2, 3, 4, 5, 6, 7, 8
    T0 = 10
    IN = 20; OUT = 34; ANG = 48
    D = 56; CA = 70; RK = 84; CS = 98
    DIRV = 106
    NV = 122
    sWave = 3
    e(f"""
    s_cmpk_ge_u32 s2, {NW1}
    s_cbranch_scc1 k1_done
    s_load_dwordx2 s[8:9], s[0:1], 8
    s_load_dwordx2 s[12:13], s[0:1], 16
    s_load_dwordx2 s[16:17], s[0:1], 32
    s_load_dwordx2 s[4:5], s[0:1], 48
    s_load_dwordx2 s[20:21], s[0:1], 104
    v_readfirstlane_b32 s3, v0
    v_lshlrev_b32 v{vA}, 4, v0
    v_lshlrev_b32 v{vB}, 3, v0
    v_and_b32 v{T0}, 0x200, v0
    v_lshlrev_b32 v{T0}, 21, v{T0}
    v_lshl_or_b32 v{vC}, v0, 2, v{T0}
    v_lshl_or_b32 v{vD}, v0, 1, v{T0}
    v_and_b32 v{vL16}, 0x3f0, v{vA}
    v_mov_b32 v{vSix}, 6
    v_add_u32 v{vRd2}, 0x10000, v{vA}
    s_lshr_b32 s3, s3, 6
    s_mov_b32 s10, {T*4}
    s_mov_b32 s11, 0x00020000
    s_mov_b32 s14, {T*4}
    s_mov_b32 s15, 0x00020000
    s_mov_b32 s18, {T*2}
    s_mov_b32 s19, 0x00020000
    s_mov_b32 s23, 0x00020000
    s_mul_i32 s28, s2, {TPW*TILE*4}
    s_lshr_b32 s29, s28, 1
    s_mul_i32 s30, s2, {TPW*S1}
    s_waitcnt lgkmcnt(0)
    s_load_dword s6, s[4:5], 0
    """)
    def loads(k, r):
        bi = k * TILE * 4 + r * 16384
        e(f"s_add_u32 s31, s28, {bi}\ns_add_u32 s32, s29, {bi//2}")
        if r < 3:
            e.vmem(f"buffer_load_dwordx4 {vr(IN+4*r,4)}, v{vA}, s[8:11], s31 offen{LDPOL}", ("L",k,r))
            e.vmem(f"buffer_load_dwordx4 {vr(OUT+4*r,4)}, v{vA}, s[12:15], s31 offen{LDPOL}", ("L",k,r))
            e.vmem(f"buffer_load_dwordx2 {vr(ANG+2*r,2)}, v{vB}, s[16:19], s32 offen{LDPOL}", ("L",k,r))
        else:
            e.vmem(f"buffer_load_dword v{IN+12}, v{vC}, s[8:11], s31 offen{LDPOL}", ("L",k,r))
            e.vmem(f"buffer_load_dword v{OUT+12}, v{vC}, s[12:15], s31 offen{LDPOL}", ("L",k,r))
            e.vmem(f"buffer_load_ushort v{ANG+6}, v{vD}, s[16:19], s32 offen{LDPOL}", ("L",k,r))
    for r in range(4): loads(0, r)
    e(f"""
    v_mov_b32 v{T0}, 0
    v_mov_b32 v{T0+1}, 0
    v_mov_b32 v{T0+2}, 0
    v_mov_b32 v{T0+3}, 0
    ds_write_b128 v{vL16}, {vr(T0,4)} offset:{K1_CNT[0]}
    """)
    add64(e, 24, 20, DIR1)
    e(f"""
    s_mov_b32 s26, {1<<20}
    s_mov_b32 s27, 0x00020000
    s_waitcnt lgkmcnt(0)
    s_lshl_b32 s6, s6, 16
    v_mov_b32 v{vFreq}, s6
    s_barrier
    """)
    def idx_ops(j):
        e(f"""
        v_lshrrev_b32 v{CA+j}, 4, v{IN+j}
        v_lshrrev_b32 v{D+j}, 8, v{IN+j}
        v_and_b32 v{CA+j}, 0x3fc, v{CA+j}
        v_bfi_b32 v{D+j}, 63, v{IN+j}, v{D+j}
        v_lshl_add_u32 v{D+j}, v{D+j}, 20, v{OUT+j}
        """)
    def cos_pairs(ps):
        t = {p: T0 + 2*i for i, p in enumerate(ps)}
        def each(f):
            for p in ps: e(f(p, t[p], t[p]+1))
        each(lambda p,a,b: f"v_lshlrev_b32 v{a}, 16, v{ANG+p}\nv_and_b32 v{b}, 0xffff0000, v{ANG+p}")
        each(lambda p,a,b: f"v_mul_f32 v{a}, v{vFreq}, v{a}\nv_mul_f32 v{b}, v{vFreq}, v{b}")
        each(lambda p,a,b: f"v_cvt_pk_bf16_f32 v{b}, v{a}, v{b}")
        each(lambda p,a,b: f"v_lshlrev_b32 v{a}, 16, v{b}\nv_and_b32 v{b}, 0xffff0000, v{b}")
        each(lambda p,a,b: f"v_mul_f32 v{a}, 0.15915494, v{a}\nv_mul_f32 v{b}, 0.15915494, v{b}")
        each(lambda p,a,b: f"v_fract_f32 v{a}, v{a}\nv_fract_f32 v{b}, v{b}")
        each(lambda p,a,b: f"v_cos_f32 v{a}, v{a}\nv_cos_f32 v{b}, v{b}")
        e("s_nop 0")
        each(lambda p,a,b: f"v_cvt_pk_bf16_f32 v{b}, v{a}, v{b}")
        each(lambda p,a,b: f"v_lshlrev_b32 v{a}, 16, v{b}\nv_and_b32 v{b}, 0xffff0000, v{b}")
        each(lambda p,a,b: f"v_cvt_pkrtz_f16_f32 v{CS+p}, v{a}, v{b}")
    for k in range(TPW):
        cnt = K1_CNT[k & 1]; cnt_o = K1_CNT[(k + 1) & 1]
        for r in range(3):
            e.waitvm(("L", k, r))
            for j in range(4*r, 4*r+4): idx_ops(j)
            for j in range(4*r, 4*r+4):
                e(f"ds_add_rtn_u32 v{RK+j}, v{CA+j}, v{vSix} offset:{cnt}")
            cos_pairs([2*r, 2*r+1])
            if k + 1 < TPW: loads(k + 1, r)
        e.waitvm(("L", k, 3))
        e(f"s_cmp_ge_u32 s{sWave}, 8\ns_cbranch_scc1 k1_s13a_{k}")
        idx_ops(12)
        e(f"ds_add_rtn_u32 v{RK+12}, v{CA+12}, v{vSix} offset:{cnt}")
        cos_pairs([6])
        e(f"k1_s13a_{k}:")
        if k + 1 < TPW: loads(k + 1, 3)
        e("s_waitcnt lgkmcnt(0)\ns_barrier")
        c = T0; cp = T0 + 4; sc = T0 + 8; tt = T0 + 9
        e(f"ds_read_b128 {vr(c,4)}, v{vL16} offset:{cnt}\ns_waitcnt lgkmcnt(0)")
        for i in range(4): e(f"v_and_b32 v{cp+i}, 2, v{c+i}")
        for i in range(4): e(f"v_mad_u32_u24 v{cp+i}, v{cp+i}, 3, v{c+i}")
        e(f"v_add_u32 v{tt}, v{cp}, v{cp+1}\nv_add3_u32 v{tt}, v{tt}, v{cp+2}, v{cp+3}\nv_mov_b32 v{sc}, v{tt}")
        wave_scan(e, sc)
        b = NV
        e(f"""
        s_nop 0
        v_readlane_b32 s33, v{sc}, 63
        v_sub_u32 v{b}, v{sc}, v{tt}
        v_add_u32 v{b}, 2, v{b}
        v_add_u32 v{b+1}, v{b}, v{cp}
        v_add_u32 v{b+2}, v{b+1}, v{cp+1}
        v_add_u32 v{b+3}, v{b+2}, v{cp+2}
        ds_write_b128 v{vL16}, {vr(b,4)} offset:{K1_BASE}
        s_add_u32 s34, s30, {k*S1}
        s_add_u32 s22, s34, s33
        s_waitcnt lgkmcnt(0)
        """)
        for j in range(12):
            e(f"ds_read_b32 v{CA+j}, v{CA+j} offset:{K1_BASE}")
        e(f"s_cmp_ge_u32 s{sWave}, 8\ns_cbranch_scc1 k1_s13r_{k}")
        e(f"ds_read_b32 v{CA+12}, v{CA+12} offset:{K1_BASE}")
        e(f"k1_s13r_{k}:")
        e(f"s_cmp_lg_u32 s{sWave}, 15\ns_cbranch_scc1 k1_dutyA_{k}")
        for i in range(4):
            e(f"v_lshrrev_b32 v{tt}, 2, v{b+i}\nv_lshl_or_b32 v{DIRV+4*i+k}, v{cp+i}, 14, v{tt}")
        e(f"k1_dutyA_{k}:")
        e(f"s_cmp_lg_u32 s{sWave}, 14\ns_cbranch_scc1 k1_dutyB_{k}")
        for i in range(4):
            e(f"""
            v_lshlrev_b32 v{tt}, 4, v{vL16}
            v_add_u32 v{tt}, {(DUMMY_CHUNK<<14) + i*64}, v{tt}
            v_add_u32 v{sc}, v{b+i}, v{c+i}
            v_cmpx_ne_u32 vcc, v{cp+i}, v{c+i}
            ds_write_b32 v{sc}, v{tt} offset:{K1_BUF}
            s_mov_b64 exec, -1
            """)
        e(f"k1_dutyB_{k}:")
        if k + 1 < TPW:
            e(f"s_cmp_lg_u32 s{sWave}, 13\ns_cbranch_scc1 k1_dutyC_{k}")
            for i in range(4): e(f"v_mov_b32 v{c+i}, 0")
            e(f"ds_write_b128 v{vL16}, {vr(c,4)} offset:{cnt_o}")
            e(f"k1_dutyC_{k}:")
        e("s_waitcnt lgkmcnt(0)")
        def scat(j):
            e(f"""
            v_add_u32 v{RK+j}, v{RK+j}, v{CA+j}
            v_and_b32 v{CA+j}, -4, v{RK+j}
            v_sub_u32 v{tt}, v{RK+j}, v{CA+j}
            v_lshl_add_u32 v{RK+j}, v{tt}, 1, v{RK+j}
            ds_write_b32 v{CA+j}, v{D+j} offset:{K1_BUF}
            ds_write_b16{'_d16_hi' if j & 1 else ''} v{RK+j}, v{CS+j//2} offset:{K1_BUF-2}
            """)
        for j in range(12): scat(j)
        e(f"s_cmp_ge_u32 s{sWave}, 8\ns_cbranch_scc1 k1_s13b_{k}")
        scat(12)
        e(f"k1_s13b_{k}:")
        e("s_waitcnt lgkmcnt(0)\ns_barrier")
        R = D
        for r in range(4): e(f"ds_read_b128 {vr(R+4*r,4)}, v{vA} offset:{K1_BUF + r*16384}")
        e(f"ds_read_b128 {vr(R+16,4)}, v{vRd2} offset:{K1_BUF}")
        for r in range(5):
            e(f"s_add_u32 s31, s34, {r*16384}\ns_waitcnt lgkmcnt({4-r})")
            e.vmem(f"buffer_store_dwordx4 {vr(R+4*r,4)}, v{vA}, s[20:23], s31 offen{STPOL}", ("S", k))
        e("s_nop 1")
    e(f"""
    s_cmp_lg_u32 s{sWave}, 15
    s_cbranch_scc1 k1_done
    v_lshlrev_b32 v{T0}, 10, v{vL16}
    s_lshl_b32 s31, s2, 4
    """)
    for i in range(4):
        e(f"buffer_store_dwordx4 {vr(DIRV+4*i,4)}, v{T0}, s[24:27], s31 offen{STPOL}\ns_add_u32 s31, s31, 4096")
    e("k1_done:\ns_endpgm")
    return e.text(), NV + 4, 40


def row_scan(e, vs, op="v_add_u32"):
    for sh in (1, 2, 4, 8):
        if len(vs) < 3: e(f"s_nop {2-len(vs)}")
        for v in vs: e(f"{op}_dpp v{v}, v{v}, v{v} row_shr:{sh} row_mask:0xf bank_mask:0xf")

def map_part1(e, vN, vScan, vRk, t, sWave, sOwnN, sOwnR, WTOT, extra=None):
    e(f"""
    v_cmp_lt_u32 vcc, 0, v{vN}
    v_mov_b32 v{vScan}, v{vN}
    s_nop 0
    v_mbcnt_lo_u32_b32 v{vRk}, vcc_lo, 0
    v_mbcnt_hi_u32_b32 v{vRk}, vcc_hi, v{vRk}
    s_bcnt1_i32_b64 s{sOwnR}, vcc
    """)
    wave_scan(e, vScan)
    e(f"""
    s_nop 0
    v_readlane_b32 s{sOwnN}, v{vScan}, 63
    s_lshl_b32 s31, s{sWave}, 4
    v_mov_b32 v{t+2}, s31
    v_mov_b32 v{t+1}, s{sOwnR}
    v_mov_b32 v{t}, s{sOwnN}
    ds_write_b64 v{t+2}, {vr(t,2)} offset:{WTOT}
    """)
    if extra is not None:
        e(f"v_mov_b32 v{t}, s{extra}\nds_write_b32 v{t+2}, v{t} offset:{WTOT+8}")

def map_part2(e, vN, vScan, vRk, t, vL16, sWave, sOwnN, sOwnR, sU, WTOT):
    e(f"""
    v_and_b32 v{t}, 0xf0, v{vL16}
    ds_read_b128 {vr(t,4)}, v{t} offset:{WTOT}
    s_waitcnt lgkmcnt(0)
    """)
    row_scan(e, [t, t+1])
    e(f"""
    s_nop 0
    v_readlane_b32 s{sU}, v{t}, 15
    v_readlane_b32 s31, v{t}, s{sWave}
    v_readlane_b32 s32, v{t+1}, s{sWave}
    v_sub_u32 v{vScan}, v{vScan}, v{vN}
    s_sub_u32 s31, s31, s{sOwnN}
    s_sub_u32 s32, s32, s{sOwnR}
    v_add_u32 v{vScan}, s31, v{vScan}
    v_add_u32 v{vRk}, s32, v{vRk}
    """)

def map_part3(e, pfx, vN, vF, vRk, t, MAP):
    e(f"""
    v_add_u32 v{t}, v{vF}, v{vN}
    v_add_u32 v{t+1}, -1, v{t}
    v_lshrrev_b32 v{t+2}, 2, v{t+1}
    v_and_b32 v{t+2}, -16, v{t+2}
    v_lshrrev_b32 v{t+3}, 3, v{t+1}
    v_and_or_b32 v{t+2}, v{t+3}, 4, v{t+2}
    v_lshlrev_b32 v{t+1}, v{t+1}, 1
    ds_or_b32 v{t+2}, v{t+1} offset:{MAP}
    v_add_u32 v{t+1}, 63, v{vF}
    v_and_b32 v{t+1}, 0xffffffc0, v{t+1}
    {pfx}_rloop:
    v_cmpx_lt_u32 vcc, v{t+1}, v{t}
    s_cbranch_execz {pfx}_rdone
    v_lshrrev_b32 v{t+2}, 2, v{t+1}
    ds_write_b32 v{t+2}, v{vRk} offset:{MAP+8}
    v_add_u32 v{t+1}, 64, v{t+1}
    s_branch {pfx}_rloop
    {pfx}_rdone:
    s_mov_b64 exec, -1
    """)

def unpack_s(e, dst, src, n):
    for i in range(0, n, 2):
        e(f"s_lshl_b32 s{dst+i}, s{src+i//2}, 16\ns_and_b32 s{dst+i+1}, s{src+i//2}, 0xffff0000")

K2_CNT = (0, 1024); K2_BASE = 2048; K2_WTOT = 3072; K2_DEL = 3328; K2_MAP = K2_DEL + 4096
K2_TAB = K2_MAP + 4 * CB2 * 16 + 112 * 16
K2_BUF = K2_TAB + 3136 * 8
K2_LDS = K2_BUF + S2
assert K2_BUF % 16 == 0 and K2_LDS <= 163840 and K2_BUF < 65536 - 16384

def gen_k2():
    e = Asm()
    e.raw(kstart("k2_kernel"))
    vA, vA2, vL16, vEight, vQ, vEnt, vA3 = 1, 2, 3, 4, 5, 6, 7
    T0 = 8
    B4 = 18
    RAW = 22
    V = 50
    CA = 78; RK = 92
    DIRV = 106
    NV = 122
    sWave, sB, sU, sCB, sOwnN, sOwnR, sMsk = 3, 35, 36, 37, 38, 39, 40
    MK = (42, 56)
    sW = 72
    e(f"""
    s_cmpk_ge_u32 s2, 256
    s_cbranch_scc1 k2_done
    s_load_dwordx2 s[8:9], s[0:1], 104
    s_load_dwordx2 s[12:13], s[0:1], 0
    s_load_dwordx2 s[4:5], s[0:1], 72
    v_readfirstlane_b32 s3, v0
    s_and_b32 s{sB}, s2, 7
    s_lshl_b32 s{sB}, s{sB}, 5
    s_lshr_b32 s31, s2, 3
    s_add_u32 s{sB}, s{sB}, s31
    s_lshr_b32 s3, s3, 6
    v_lshlrev_b32 v{vA}, 4, v0
    v_lshlrev_b32 v{T0}, 2, v0
    v_and_b32 v{vL16}, 0x3f0, v{vA}
    v_add_u32 v{vA2}, 0x8000, v{vA}
    v_add_u32 v{vA3}, 0x10000, v{vA}
    v_mov_b32 v{vEight}, 8
    s_mov_b32 s{sMsk}, 0x00070007
    s_lshl_b32 s31, s{sB}, 12
    s_add_u32 s31, s31, {DIR1}
    s_mov_b32 s18, {NT1*4}
    s_mov_b32 s19, 0x00020000
    s_mov_b32 s14, {E*8}
    s_mov_b32 s15, 0x00020000
    s_mov_b32 s10, {REC1_SZ}
    s_mov_b32 s11, 0x00020000
    s_waitcnt lgkmcnt(0)
    s_add_u32 s16, s8, s31
    s_addc_u32 s17, s9, 0
    s_load_dwordx8 s[88:95], s[4:5], 0
    """)
    vE = T0 + 4
    e.vmem(f"buffer_load_dword v{vE}, v{T0}, s[16:19], 0 offen", "dir")
    M = CA
    e(f"""
    v_lshrrev_b32 v{T0+1}, 1, v{vL16}
    s_lshl_b32 s31, s{sWave}, 17
    s_lshl_b32 s32, s{sB}, 9
    s_add_u32 s31, s31, s32
    """)
    for j in range(4):
        e.vmem(f"buffer_load_dwordx2 {vr(M+2*j,2)}, v{T0+1}, s[12:15], s31 offen", "m")
        if j < 3: e(f"s_add_u32 s31, s31, {16<<17}")
    add64(e, 20, 8, REC2)
    add64(e, 24, 8, DIR2)
    e(f"""
    s_mov_b32 s23, 0x00020000
    s_mov_b32 s26, {(1<<20) + 1024}
    s_mov_b32 s27, 0x00020000
    s_mul_i32 s30, s{sB}, {4*S2}
    v_mov_b32 v{V}, 0
    v_mov_b32 v{V+1}, 0
    v_mov_b32 v{V+2}, 0
    v_mov_b32 v{V+3}, 0
    ds_write_b128 v{vL16}, {vr(V,4)} offset:{K2_CNT[0]}
    v_cmpx_gt_u32 vcc, {(K2_TAB-K2_MAP)//16}, v0
    ds_write_b128 v{vA}, {vr(V,4)} offset:{K2_MAP}
    s_mov_b64 exec, -1
    """)
    vN, vF, vRk = T0 + 5, T0 + 6, T0 + 7
    e.waitvm("dir")
    e(f"""
    v_lshrrev_b32 v{vN}, 16, v{vE}
    v_mul_u32_u24 v{vN}, 21846, v{vN}
    v_lshrrev_b32 v{vN}, 16, v{vN}
    """)
    map_part1(e, vN, vF, vRk, T0, sWave, sOwnN, sOwnR, K2_WTOT)
    e("s_waitcnt lgkmcnt(0)\ns_barrier")
    map_part2(e, vN, vF, vRk, T0, vL16, sWave, sOwnN, sOwnR, sU, K2_WTOT)
    e(f"""
    s_cmp_gt_u32 s{sU}, {4*CB2*64}
    s_cbranch_scc1 k2_overflow
    s_add_u32 s{sCB}, s{sU}, 255
    s_lshr_b32 s{sCB}, s{sCB}, 8
    v_and_b32 v{vE}, 0xffff, v{vE}
    v_mul_u32_u24 v{T0}, {S1//4}, v0
    v_mul_u32_u24 v{T0+1}, 3, v{vF}
    v_add_u32 v{vE}, v{vE}, v{T0}
    v_sub_u32 v{vE}, v{vE}, v{T0+1}
    v_lshlrev_b32 v{vE}, 2, v{vE}
    v_lshlrev_b32 v{T0}, 2, v{vRk}
    v_cmpx_lt_u32 vcc, 0, v{vN}
    ds_write_b32 v{T0}, v{vE} offset:{K2_DEL}
    """)
    map_part3(e, "k2", vN, vF, vRk, T0, K2_MAP)
    e(f"""
    v_mul_u32_u24 v{vQ}, 12, v0
    s_lshl_b32 s31, s{sWave}, 4
    v_mov_b32 v{vEnt}, s31
    s_waitcnt lgkmcnt(0)
    s_barrier
    """)
    def addr_a(j):
        mk = MK[j & 1]
        e(f"""
        s_mul_i32 s31, s{sCB}, {64*j}
        s_sub_i32 s31, s{sU}, s31
        s_lshl_b32 s32, s{sCB}, 6
        s_min_i32 s31, s31, s32
        """)
        for r in range(7):
            e(f"v_cmp_gt_i32_e64 {sr(mk+2*r,2)}, s31, v0")
            e(f"ds_read_b128 {vr(V+4*r,4)}, v{vEnt} offset:{K2_MAP + r*256}")
            if r < 6: e("s_sub_i32 s31, s31, 1024")
    def addr_b(j):
        mk = MK[j & 1]
        for r in range(7):
            e(f"""
            v_mbcnt_lo_u32_b32 v{V+4*r+2}, v{V+4*r}, v{V+4*r+2}
            v_mbcnt_hi_u32_b32 v{V+4*r+2}, v{V+4*r+1}, v{V+4*r+2}
            v_lshlrev_b32 v{V+4*r+2}, 2, v{V+4*r+2}
            v_bfrev_b32 v{RAW+4*r+3}, 1
            ds_read_b32 v{V+4*r+2}, v{V+4*r+2} offset:{K2_DEL}
            """)
        e("s_waitcnt lgkmcnt(0)")
        for r in range(7):
            e(f"""
            s_mov_b64 exec, {sr(mk+2*r,2)}
            s_mov_b32 s31, {r*12288}
            v_add3_u32 v{RAW+4*r+3}, v{V+4*r+2}, v{vQ}, s31
            """)
        e(f"""
        s_mov_b64 exec, -1
        s_lshl_b32 s31, s{sCB}, 4
        s_mul_i32 s32, s{sCB}, 768
        v_add_u32 v{vEnt}, s31, v{vEnt}
        v_add_u32 v{vQ}, s32, v{vQ}
        """)
    def load(j, r):
        e.vmem(f"buffer_load_dwordx3 {vr(RAW+4*r,3)}, v{RAW+4*r+3}, s[8:11], 0 offen{RDPOL}", ("L", j, r))
    addr_a(0); e("s_waitcnt lgkmcnt(0)"); addr_b(0)
    for r in range(7): load(0, r)
    addr_a(1); e("s_waitcnt lgkmcnt(0)"); addr_b(1)
    unpack_s(e, sW, 88, 16)
    e.waitvm("m")
    MD = V
    vMax = T0 + 4
    e(f"v_mov_b32 v{vMax}, 0")
    def md_row(j):
        x = T0
        e(f"""
        v_lshlrev_b32 v{x}, 16, v{M+2*j}
        v_and_b32 v{x+1}, 0xffff0000, v{M+2*j}
        v_lshlrev_b32 v{x+2}, 16, v{M+2*j+1}
        v_and_b32 v{x+3}, 0xffff0000, v{M+2*j+1}
        """)
        for h in range(2):
            d = vr(MD + 4*j + 2*h, 2)
            e(f"v_pk_mul_f32 {d}, {vr(x,2)}, {sr(sW+2*h,2)} op_sel:[0,0] op_sel_hi:[0,1]")
            e(f"v_pk_fma_f32 {d}, {vr(x,2)}, {sr(sW+4+2*h,2)}, {d} op_sel:[1,0,0] op_sel_hi:[1,1,1]")
            e(f"v_pk_fma_f32 {d}, {vr(x+2,2)}, {sr(sW+8+2*h,2)}, {d} op_sel:[0,0,0] op_sel_hi:[0,1,1]")
            e(f"v_pk_fma_f32 {d}, {vr(x+2,2)}, {sr(sW+12+2*h,2)}, {d} op_sel:[1,0,0] op_sel_hi:[1,1,1]")
        for h in range(2):
            a = MD + 4*j + 2*h
            e(f"""
            v_cvt_pk_bf16_f32 v{a+1}, v{a}, v{a+1}
            v_lshlrev_b32 v{a}, 16, v{a+1}
            v_and_b32 v{a+1}, 0xffff0000, v{a+1}
            v_and_b32 v{x}, 0x7fffffff, v{a}
            v_and_b32 v{x+1}, 0x7fffffff, v{a+1}
            v_max3_u32 v{vMax}, v{x}, v{x+1}, v{vMax}
            """)
    for j in range(3): md_row(j)
    e(f"s_cmp_lg_u32 s{sWave}, 0\ns_cbranch_scc1 k2_md3")
    md_row(3)
    e("k2_md3:")
    wave_scan(e, vMax, "v_max_u32")
    e(f"""
    s_nop 0
    v_readlane_b32 s32, v{vMax}, 63
    s_lshl_b32 s31, s{sWave}, 4
    v_mov_b32 v{T0}, s31
    v_mov_b32 v{T0+1}, s32
    ds_write_b32 v{T0}, v{T0+1} offset:{K2_WTOT+8}
    v_and_b32 v{T0}, 0xf0, v{vL16}
    s_waitcnt lgkmcnt(0)
    s_barrier
    ds_read_b32 v{vMax}, v{T0} offset:{K2_WTOT+8}
    s_waitcnt lgkmcnt(0)
    """)
    row_scan(e, [vMax], "v_max_u32")
    e(f"""
    s_nop 0
    v_readlane_b32 s32, v{vMax}, 15
    s_nop 0
    s_lshr_b32 s32, s32, 23
    s_sub_u32 s33, 268, s32
    s_min_u32 s33, s33, 254
    s_cmp_eq_u32 s32, 255
    s_cselect_b32 s34, 0, s33
    s_lshl_b32 s32, s33, 23
    s_mov_b32 s33, s32
    v_lshrrev_b32 v{T0+2}, 1, v{vA}
    """)
    def tab_row(j):
        for h in range(2):
            a = MD + 4*j + 2*h
            e(f"v_pk_mul_f32 {vr(a,2)}, {vr(a,2)}, s[32:33]\nv_cvt_pkrtz_f16_f32 v{T0+h}, v{a}, v{a+1}")
        e(f"ds_write_b64 v{T0+2}, {vr(T0,2)} offset:{K2_TAB + j*8192}")
    for j in range(3): tab_row(j)
    e(f"s_cmp_lg_u32 s{sWave}, 0\ns_cbranch_scc1 k2_tab3")
    tab_row(3)
    e("k2_tab3:")
    e("s_waitcnt lgkmcnt(0)\ns_barrier")
    def stage_a(j, r, cnt):
        e.waitvm(("L", j, r))
        e(f"s_mov_b64 exec, {sr(MK[j&1]+2*r,2)}")
        for h in range(2):
            d = RAW + 4*r + 2*h; i = 2*r + h
            e(f"""
            v_lshrrev_b32 v{T0+h}, 17, v{d}
            v_lshrrev_b32 v{CA+i}, 4, v{d}
            v_and_b32 v{T0+h}, 0x7ff8, v{T0+h}
            v_and_b32 v{CA+i}, 0x3fc, v{CA+i}
            ds_read_b64 {vr(V+2*i,2)}, v{T0+h} offset:{K2_TAB}
            ds_add_rtn_u32 v{RK+i}, v{CA+i}, v{vEight} offset:{cnt}
            v_lshlrev_b32 v{T0+2+h}, 2, v{d}
            v_bfi_b32 v{d}, 63, v{d}, v{T0+2+h}
            """)
    def stage_b(j, r):
        for h in range(2):
            d = RAW + 4*r + 2*h; i = 2*r + h; c = RAW + 4*r + 1
            sel = f"op_sel:[0,{h}] op_sel_hi:[1,{h}]"
            e(f"""
            v_pk_mul_f16 v{V+2*i}, v{V+2*i}, v{c} {sel}
            v_pk_mul_f16 v{V+2*i+1}, v{V+2*i+1}, v{c} {sel}
            v_lshrrev_b32 v{T0+h}, 3, v{d}
            v_add_u32 v{V+2*i}, 0x40004, v{V+2*i}
            v_add_u32 v{V+2*i+1}, 0x40004, v{V+2*i+1}
            v_bfi_b32 v{V+2*i}, s{sMsk}, v{d}, v{V+2*i}
            v_bfi_b32 v{V+2*i+1}, s{sMsk}, v{T0+h}, v{V+2*i+1}
            """)
    for j in range(4):
        cnt = K2_CNT[j & 1]; cnt_o = K2_CNT[(j + 1) & 1]; mk = MK[j & 1]
        for grp in ((0, 1, 2), (3, 4, 5)):
            for r in grp: stage_a(j, r, cnt)
            e("s_mov_b64 exec, -1\ns_waitcnt lgkmcnt(0)")
            for r in grp:
                stage_b(j, r)
                if j < 3: load(j + 1, r)
        e.waitvm(("L", j, 6))
        e.vm.insert(0, ("L", j, 6))
        e(f"s_cmp_eq_u64 {sr(mk+12,2)}, 0\ns_cbranch_scc1 k2_r6_{j}")
        stage_a(j, 6, cnt)
        e("s_mov_b64 exec, -1\ns_waitcnt lgkmcnt(0)")
        stage_b(j, 6)
        e(f"k2_r6_{j}:")
        if j < 3: load(j + 1, 6)
        e("s_barrier")
        c = T0; cp = T0 + 4; sc = T0 + 8; tt = T0 + 9; b = B4
        e(f"ds_read_b128 {vr(c,4)}, v{vL16} offset:{cnt}\ns_waitcnt lgkmcnt(0)")
        for i in range(4): e(f"v_and_b32 v{cp+i}, 8, v{c+i}")
        for i in range(4): e(f"v_add_u32 v{cp+i}, v{cp+i}, v{c+i}")
        e(f"v_add_u32 v{tt}, v{cp}, v{cp+1}\nv_add3_u32 v{tt}, v{tt}, v{cp+2}, v{cp+3}\nv_mov_b32 v{sc}, v{tt}")
        wave_scan(e, sc)
        e(f"""
        s_nop 0
        v_readlane_b32 s33, v{sc}, 63
        v_sub_u32 v{b}, v{sc}, v{tt}
        v_add_u32 v{b+1}, v{b}, v{cp}
        v_add_u32 v{b+2}, v{b+1}, v{cp+1}
        v_add_u32 v{b+3}, v{b+2}, v{cp+2}
        ds_write_b128 v{vL16}, {vr(b,4)} offset:{K2_BASE}
        s_add_u32 s29, s30, {j*S2}
        s_add_u32 s22, s29, s33
        s_waitcnt lgkmcnt(0)
        """)
        for r in range(7):
            e(f"s_mov_b64 exec, {sr(mk+2*r,2)}")
            for h in range(2): e(f"ds_read_b32 v{CA+2*r+h}, v{CA+2*r+h} offset:{K2_BASE}")
        e("s_mov_b64 exec, -1")
        e(f"s_cmp_lg_u32 s{sWave}, 15\ns_cbranch_scc1 k2_dutyA_{j}")
        for i in range(4):
            e(f"v_lshrrev_b32 v{tt}, 4, v{b+i}\nv_lshl_or_b32 v{DIRV+4*i+j}, v{cp+i}, 12, v{tt}")
        e(f"k2_dutyA_{j}:")
        e(f"s_cmp_lg_u32 s{sWave}, 14\ns_cbranch_scc1 k2_dutyB_{j}")
        e(f"v_mov_b32 v{sc}, {(DUMMY_CHUNK & 7) << 16}\nv_mov_b32 v{tt}, {(DUMMY_CHUNK >> 3) << 16}")
        for i in range(4):
            e(f"""
            v_add_u32 v{b+i}, v{b+i}, v{c+i}
            v_cmpx_ne_u32 vcc, v{cp+i}, v{c+i}
            ds_write_b64 v{b+i}, {vr(sc,2)} offset:{K2_BUF}
            s_mov_b64 exec, -1
            """)
        e(f"k2_dutyB_{j}:")
        if j < 3:
            e(f"s_cmp_lg_u32 s{sWave}, 13\ns_cbranch_scc1 k2_dutyC_{j}")
            for i in range(4): e(f"v_mov_b32 v{c+i}, 0")
            e(f"ds_write_b128 v{vL16}, {vr(c,4)} offset:{cnt_o}")
            e(f"k2_dutyC_{j}:")
        e("s_waitcnt lgkmcnt(0)")
        for r in range(7):
            e(f"s_mov_b64 exec, {sr(mk+2*r,2)}")
            for h in range(2):
                i = 2*r + h
                e(f"v_add_u32 v{RK+i}, v{RK+i}, v{CA+i}\nds_write_b64 v{RK+i}, {vr(V+2*i,2)} offset:{K2_BUF}")
        e("s_mov_b64 exec, -1\ns_waitcnt lgkmcnt(0)\ns_barrier")
        R = CA
        for r in range(7):
            base = (vA, vA2, vA3, vA3)[r // 2]
            off = K2_BUF + (r % 2) * 16384
            if r == 6:
                e(f"v_add_u32 v{T0}, 0x18000, v{vA}"); base = T0
            e(f"ds_read_b128 {vr(R+4*r,4)}, v{base} offset:{off}")
        nxt = j + 2 < 4
        if nxt: addr_a(j + 2)
        for r in range(7):
            e(f"s_add_u32 s31, s29, {r*16384}\ns_waitcnt lgkmcnt({6-r + (7 if nxt else 0)})")
            e.vmem(f"buffer_store_dwordx4 {vr(R+4*r,4)}, v{vA}, s[20:23], s31 offen{STPOL}", ("S", j))
        if nxt:
            e("s_waitcnt lgkmcnt(0)"); addr_b(j + 2)
        else: e("s_nop 1")
    e(f"""
    s_cmp_lg_u32 s{sWave}, 15
    s_cbranch_scc1 k2_done
    v_lshlrev_b32 v{T0}, 10, v{vL16}
    s_lshl_b32 s31, s{sB}, 4
    """)
    for i in range(4):
        e(f"buffer_store_dwordx4 {vr(DIRV+4*i,4)}, v{T0}, s[24:27], s31 offen{STPOL}\ns_add_u32 s31, s31, 4096")
    e(f"""
    s_branch k2_scal
    k2_overflow:
    s_mov_b32 s34, 0
    k2_scal:
    s_lshl_b32 s31, s{sB}, 2
    s_add_u32 s31, s31, {1<<20}
    v_mov_b32 v{T0}, 0
    v_mov_b32 v{T0+1}, s34
    buffer_store_dword v{T0+1}, v{T0}, s[24:27], s31 offen{STPOL}
    k2_done:
    s_endpgm
    """)
    return e.text(), NV, 100


G3 = 5
CAP3 = 512
K3_WTOT = 0; K3_FLAG = 256; K3_DEL = 272; K3_MAP = K3_DEL + 8192 + 16
K3_NENT = CAP3 + 16 * (3 * G3)
K3_ACC = K3_MAP + K3_NENT * 16
AST = 12800
K3_F64 = 512
K3_LDS = max(K3_ACC + 5 * AST, K3_F64 + 4 * 25600)
HR = 6
CHK = 10

def gen_k3():
    e = Asm()
    e.raw(kstart("k3_kernel"))
    vA, vL16, vMsk, vBase, vOne, vEnt, vQ, vRow = 1, 2, 3, 4, 5, 6, 7, 8
    T0 = 10
    X = 26
    EN = 46
    F = 66; NA = 71; NF = 76
    DI = 81
    M = 86
    SR = 94
    NV = 126
    sWave, sB, sU, sOwnN, sOwnR, sEmin, sRem, sRemA, sW0, sW1, sRow = 3, 35, 36, 38, 39, 40, 41, 42, 43, 44, 45
    sCen, sRbf, sSbf, sUp, sT = 48, 52, 68, 84, 92
    e(f"""
    s_cmpk_ge_u32 s2, 256
    s_cbranch_scc1 k3_done
    s_load_dwordx2 s[6:7], s[0:1], 104
    s_load_dwordx2 s[12:13], s[0:1], 0
    s_load_dwordx2 s[20:21], s[0:1], 24
    s_load_dwordx2 s[24:25], s[0:1], 88
    s_load_dwordx2 s[4:5], s[0:1], 40
    s_load_dwordx4 s[92:95], s[0:1], 56
    s_load_dwordx2 s[96:97], s[0:1], 80
    v_readfirstlane_b32 s3, v0
    s_and_b32 s{sB}, s2, 7
    s_lshl_b32 s{sB}, s{sB}, 5
    s_lshr_b32 s31, s2, 3
    s_add_u32 s{sB}, s{sB}, s31
    s_lshr_b32 s3, s3, 6
    v_lshlrev_b32 v{vA}, 4, v0
    v_lshlrev_b32 v{T0}, 2, v0
    v_and_b32 v{T0+1}, 0x3fc, v0
    v_and_b32 v{vL16}, 0x3f0, v{vA}
    v_mov_b32 v{vMsk}, 0x00070007
    v_mov_b32 v{vBase}, {K3_ACC}
    v_mov_b32 v{vOne}, 1
    s_mov_b32 s{sW0}, {4 | (256 << 16)}
    s_mov_b32 s{sW1}, {32 | (2048 << 16)}
    s_mov_b32 s18, {(1<<20) + 1024}
    s_mov_b32 s19, 0x00020000
    s_mov_b32 s14, {E*8}
    s_mov_b32 s15, 0x00020000
    s_mov_b32 s22, {E*2}
    s_mov_b32 s23, 0x00020000
    s_mov_b32 s26, {E*8}
    s_mov_b32 s27, 0x00020000
    s_mov_b32 s10, {REC2_SZ}
    s_mov_b32 s11, 0x00020000
    s_lshl_b32 s31, s{sB}, 12
    s_mov_b32 s32, {1<<20}
    s_waitcnt lgkmcnt(0)
    """)
    add64(e, 16, 6, DIR2)
    add64(e, 8, 6, REC2)
    vE, vSc = T0 + 4, T0 + 8
    e.vmem(f"buffer_load_dword v{vE}, v{T0}, s[16:19], s31 offen", "dir")
    e.vmem(f"buffer_load_dword v{vSc}, v{T0+1}, s[16:19], s32 offen", "dir")
    e(f"""
    s_load_dwordx4 {sr(sCen,4)}, s[4:5], 0
    s_load_dwordx16 {sr(sRbf,16)}, s[92:93], 0
    s_load_dwordx16 {sr(sSbf,16)}, s[94:95], 0
    s_load_dwordx8 {sr(sUp,8)}, s[96:97], 0
    v_lshrrev_b32 v{vRow}, 1, v{vL16}
    v_lshrrev_b32 v{T0+1}, 3, v{vL16}
    s_lshl_b32 s{sRow}, s{sWave}, 17
    s_lshl_b32 s32, s{sB}, 9
    s_add_u32 s{sRow}, s{sRow}, s32
    s_lshr_b32 s31, s{sRow}, 2
    """)
    for j in range(4):
        e.vmem(f"buffer_load_ushort v{DI+j}, v{T0+1}, s[20:23], s31 offen", "dist")
        if j < 3: e(f"s_add_u32 s31, s31, {16<<15}")
    e(f"s_mov_b32 s31, s{sRow}")
    for j in range(4):
        e.vmem(f"buffer_load_dwordx2 {vr(M+2*j,2)}, v{vRow}, s[12:15], s31 offen", "m")
        if j < 3: e(f"s_add_u32 s31, s31, {16<<17}")
    for i in range(4): e(f"v_mov_b32 v{X+i}, 0")
    zbytes = K3_ACC + 5 * AST - K3_MAP
    full = zbytes // 16384; rem = (zbytes % 16384) // 16
    e(f"v_add_u32 v{T0}, 0x8000, v{vA}")
    for r in range(full):
        e(f"ds_write_b128 v{vA if r < 2 else T0}, {vr(X,4)} offset:{K3_MAP + (r if r < 2 else r-2)*16384}")
    e(f"""
    ds_write_b32 v{X}, v{X} offset:{K3_FLAG}
    v_cmpx_gt_u32 vcc, {rem}, v0
    ds_write_b128 v{T0}, {vr(X,4)} offset:{K3_MAP + (full-2)*16384}
    s_mov_b64 exec, -1
    """)
    vN, vF, vRk = T0 + 5, T0 + 6, T0 + 7
    e.waitvm("dir")
    e(f"v_lshrrev_b32 v{vN}, 16, v{vE}\nv_mov_b32 v{T0+9}, v{vSc}")
    wave_scan(e, T0 + 9, "v_min_u32")
    e(f"s_nop 0\nv_readlane_b32 s{sEmin}, v{T0+9}, 63")
    map_part1(e, vN, vF, vRk, T0, sWave, sOwnN, sOwnR, K3_WTOT, extra=sEmin)
    e("s_waitcnt lgkmcnt(0)\ns_barrier")
    map_part2(e, vN, vF, vRk, T0, vL16, sWave, sOwnN, sOwnR, sU, K3_WTOT)
    row_scan(e, [T0 + 2], "v_min_u32")
    e(f"""
    s_nop 0
    v_readlane_b32 s{sEmin}, v{T0+2}, 15
    s_cmp_gt_u32 s{sU}, {CAP3*64}
    s_cselect_b32 s{sEmin}, 0, s{sEmin}
    s_cmp_eq_u32 s{sEmin}, 0
    s_cselect_b32 s{sU}, 0, s{sU}
    s_cbranch_scc1 k3_nomap
    v_and_b32 v{vE}, 0xffff, v{vE}
    v_mul_u32_u24 v{T0}, {S2//16}, v0
    v_add_u32 v{vE}, v{vE}, v{T0}
    v_sub_u32 v{vE}, v{vE}, v{vF}
    v_lshlrev_b32 v{T0+2}, 4, v{vE}
    s_add_u32 s31, s{sEmin}, {127 + 16 - HR}
    v_sub_u32 v{T0+3}, s31, v{vSc}
    v_max_i32 v{T0+3}, 0, v{T0+3}
    v_lshlrev_b32 v{T0+3}, 23, v{T0+3}
    v_lshlrev_b32 v{T0}, 3, v{vRk}
    v_cmpx_lt_u32 vcc, 0, v{vN}
    ds_write_b64 v{T0}, {vr(T0+2,2)} offset:{K3_DEL}
    """)
    map_part3(e, "k3", vN, vF, vRk, T0, K3_MAP)
    e(f"""
    k3_nomap:
    s_lshl_b32 s31, s{sWave}, 4
    v_mov_b32 v{vEnt}, s31
    v_mov_b32 v{vQ}, v{vA}
    s_mov_b32 s{sRem}, s{sU}
    s_mov_b32 s{sRemA}, s{sU}
    s_waitcnt lgkmcnt(0)
    s_barrier
    """)
    def ent_reads():
        for i in range(G3): e(f"ds_read_b128 {vr(EN+4*i,4)}, v{vEnt} offset:{K3_MAP + i*256}")
        e(f"v_add_u32 v{vEnt}, {G3*256}, v{vEnt}")
    def del_reads():
        for i in range(G3):
            e(f"""
            v_mbcnt_lo_u32_b32 v{EN+4*i+2}, v{EN+4*i}, v{EN+4*i+2}
            v_mbcnt_hi_u32_b32 v{EN+4*i+2}, v{EN+4*i+1}, v{EN+4*i+2}
            v_lshlrev_b32 v{EN+4*i+2}, 3, v{EN+4*i+2}
            ds_read_b64 {vr(EN+4*i,2)}, v{EN+4*i+2} offset:{K3_DEL}
            """)
    def addr_fin():
        for i in range(G3):
            e(f"v_bfrev_b32 v{NA+i}, 1\nv_mov_b32 v{NF+i}, v{EN+4*i+1}")
        for i in range(G3):
            e(f"""
            v_cmpx_gt_i32 vcc, s{sRemA}, v0
            s_mov_b32 s31, {i*16384}
            v_add3_u32 v{NA+i}, v{EN+4*i}, v{vQ}, s31
            s_sub_i32 s{sRemA}, s{sRemA}, 1024
            """)
        e(f"s_mov_b64 exec, -1\nv_add_u32 v{vQ}, {G3*16384}, v{vQ}")
    def load(i):
        return f"buffer_load_dwordx4 {vr(X+4*i,4)}, v{NA+i}, s[8:11], 0 offen{RDPOL}"
    ent_reads(); e("s_waitcnt lgkmcnt(0)"); del_reads(); e("s_waitcnt lgkmcnt(0)"); addr_fin()
    for i in range(G3):
        e.vmem(load(i), "x"); e(f"v_mov_b32 v{F+i}, v{NF+i}")
    ent_reads(); e("s_waitcnt lgkmcnt(0)"); del_reads(); e("s_waitcnt lgkmcnt(0)"); addr_fin()
    e.waitvm("dist")
    def rnd2(a, b):
        e(f"v_cvt_pk_bf16_f32 v{b}, v{a}, v{b}\nv_lshlrev_b32 v{a}, 16, v{b}\nv_and_b32 v{b}, 0xffff0000, v{b}")
    def rbf_rows(rows):
        for j in rows: e(f"v_lshlrev_b32 v{DI+j}, 16, v{DI+j}")
        for p in range(4):
            unpack_s(e, sT, sCen + p, 2)
            t = {j: T0 + 2*n for n, j in enumerate(rows)}
            for j in rows: e(f"v_subrev_f32 v{t[j]}, s{sT}, v{DI+j}\nv_subrev_f32 v{t[j]+1}, s{sT+1}, v{DI+j}")
            for j in rows: rnd2(t[j], t[j]+1)
            for j in rows: e(f"v_mul_f32 v{t[j]}, v{t[j]}, v{t[j]}\nv_mul_f32 v{t[j]+1}, v{t[j]+1}, v{t[j]+1}")
            for j in rows: rnd2(t[j], t[j]+1)
            for j in rows: e(f"v_mul_f32 v{t[j]}, 0xc1200000, v{t[j]}\nv_mul_f32 v{t[j]+1}, 0xc1200000, v{t[j]+1}")
            for j in rows: rnd2(t[j], t[j]+1)
            for j in rows: e(f"v_mul_f32 v{t[j]}, 0x3fb8aa3b, v{t[j]}\nv_mul_f32 v{t[j]+1}, 0x3fb8aa3b, v{t[j]+1}")
            for j in rows: e(f"v_exp_f32 v{t[j]}, v{t[j]}\nv_exp_f32 v{t[j]+1}, v{t[j]+1}")
            e("s_nop 0")
            for j in rows: rnd2(t[j], t[j]+1)
            for h in range(2):
                r = 2*p + h
                unpack_s(e, sT, sSbf + 2*r, 4); unpack_s(e, sT + 4, sRbf + 2*r, 4)
                for j in rows:
                    for q in range(4):
                        d = vr(SR + 8*j + 2*q, 2)
                        if r == 0: e(f"v_pk_mul_f32 {d}, {vr(t[j],2)}, {sr(sT+2*q,2)} op_sel:[0,0] op_sel_hi:[0,1]")
                        else: e(f"v_pk_fma_f32 {d}, {vr(t[j],2)}, {sr(sT+2*q,2)}, {d} op_sel:[{h},0,0] op_sel_hi:[{h},1,1]")
        for j in rows:
            rnd2(SR + 8*j + 4, SR + 8*j + 5); rnd2(SR + 8*j + 6, SR + 8*j + 7)
    rbf_rows([0, 1, 2])
    e(f"s_cmp_lg_u32 s{sWave}, 0\ns_cbranch_scc1 k3_rbf3")
    rbf_rows([3])
    e("k3_rbf3:")
    unpack_s(e, sRbf, sUp, 16)
    e(f"""
    s_lshl_b32 s30, s{sWave}, 6
    k3_loop:
    s_cmp_le_i32 s{sRem}, s30
    s_cbranch_scc1 k3_loopdone
    """)
    ent_reads()
    for i in range(G3):
        e(f"s_waitcnt vmcnt({G3-1})")
        for h in range(2):
            d = X + 4*i + 2*h; a = T0 + 8 + h; t = T0 + 4*h; x = T0 + 10 + 2*h
            e(f"""
            v_and_b32 v{x}, v{vMsk}, v{d}
            v_and_b32 v{x+1}, v{vMsk}, v{d+1}
            v_dot2_u32_u16 v{a}, v{x}, s{sW0}, v{vBase}
            v_dot2_u32_u16 v{a}, v{x+1}, s{sW1}, v{a}
            v_xor_b32 v{x}, v{x}, v{d}
            v_xor_b32 v{x+1}, v{x+1}, v{d+1}
            v_fma_mix_f32 v{t}, v{x}, v{F+i}, 0 op_sel:[0,0,0] op_sel_hi:[1,0,0]
            v_fma_mix_f32 v{t+1}, v{x}, v{F+i}, 0 op_sel:[1,0,0] op_sel_hi:[1,0,0]
            v_fma_mix_f32 v{t+2}, v{x+1}, v{F+i}, 0 op_sel:[0,0,0] op_sel_hi:[1,0,0]
            v_fma_mix_f32 v{t+3}, v{x+1}, v{F+i}, 0 op_sel:[1,0,0] op_sel_hi:[1,0,0]
            """)
        e(load(i))
        e(f"v_mov_b32 v{F+i}, v{NF+i}")
        for q in range(8): e(f"v_cvt_rpi_i32_f32 v{T0+q}, v{T0+q}")
        if i == 0:
            e("s_waitcnt lgkmcnt(0)"); del_reads()
        if i == 1: e("s_waitcnt lgkmcnt(0)")
        e(f"v_cmpx_gt_i32 vcc, s{sRem}, v0")
        for h in range(2):
            for q in range(4): e(f"ds_add_u32 v{T0+8+h}, v{T0+4*h+q} offset:{q*AST}")
            e(f"ds_add_u32 v{T0+8+h}, v{vOne} offset:{4*AST}")
        e(f"s_mov_b64 exec, -1\ns_sub_i32 s{sRem}, s{sRem}, 1024")
    addr_fin()
    e(f"""
    s_branch k3_loop
    k3_loopdone:
    s_waitcnt vmcnt(0) lgkmcnt(0)
    s_barrier
    s_cmp_eq_u32 s{sEmin}, 0
    s_cbranch_scc1 k3_fallback
    """)
    e.vm = []
    def finish_row(j, A):
        S = SR + 8*j; R = S + 4; U = T0; W = sRbf
        e(f"v_pk_mul_f32 {vr(A,2)}, {vr(A,2)}, {vr(S,2)}\nv_pk_mul_f32 {vr(A+2,2)}, {vr(A+2,2)}, {vr(S+2,2)}")
        rnd2(A, A+1); rnd2(A+2, A+3)
        for h in range(2):
            d = vr(U + 2*h, 2)
            e(f"v_pk_mul_f32 {d}, {vr(A,2)}, {sr(W+2*h,2)} op_sel:[0,0] op_sel_hi:[0,1]")
            e(f"v_pk_fma_f32 {d}, {vr(A,2)}, {sr(W+4+2*h,2)}, {d} op_sel:[1,0,0] op_sel_hi:[1,1,1]")
            e(f"v_pk_fma_f32 {d}, {vr(A+2,2)}, {sr(W+8+2*h,2)}, {d} op_sel:[0,0,0] op_sel_hi:[0,1,1]")
            e(f"v_pk_fma_f32 {d}, {vr(A+2,2)}, {sr(W+12+2*h,2)}, {d} op_sel:[1,0,0] op_sel_hi:[1,1,1]")
        rnd2(U, U+1); rnd2(U+2, U+3)
        e(f"v_pk_mul_f32 {vr(U,2)}, {vr(U,2)}, {vr(R,2)}\nv_pk_mul_f32 {vr(U+2,2)}, {vr(U+2,2)}, {vr(R+2,2)}")
        rnd2(U, U+1); rnd2(U+2, U+3)
        e(f"""
        v_lshlrev_b32 v{A}, 16, v{M+2*j}
        v_and_b32 v{A+1}, 0xffff0000, v{M+2*j}
        v_lshlrev_b32 v{A+2}, 16, v{M+2*j+1}
        v_and_b32 v{A+3}, 0xffff0000, v{M+2*j+1}
        v_add_f32 v{A}, v{A}, v{U}
        v_add_f32 v{A+1}, v{A+1}, v{U+1}
        v_add_f32 v{A+2}, v{A+2}, v{U+2}
        v_add_f32 v{A+3}, v{A+3}, v{U+3}
        v_cvt_pk_bf16_f32 v{A}, v{A}, v{A+1}
        v_cvt_pk_bf16_f32 v{A+1}, v{A+2}, v{A+3}
        s_add_u32 s31, s{sRow}, {j*(16<<17)}
        buffer_store_dwordx2 {vr(A,2)}, v{vRow}, s[24:27], s31 offen
        """)
    vAd = T0 + 6
    e(f"v_lshl_add_u32 v{vAd}, v0, 2, v{vBase}\ns_sub_i32 s30, {127 - 16 + HR}, s{sEmin}\ns_mov_b64 s[46:47], 0")
    def read_row(j):
        for q in range(5): e(f"ds_read_b32 v{X+6*j+q}, v{vAd} offset:{q*AST + j*4096}")
    def fast_row(j):
        A = X + 6*j
        for q in range(4): e(f"v_cvt_f32_i32 v{A+q}, v{A+q}")
        e(f"""
        v_cvt_f32_u32 v{T0}, v{A+4}
        v_max3_f32 v{T0+1}, |v{A}|, |v{A+1}|, |v{A+2}|
        v_max_f32 v{T0+1}, |v{A+3}|, v{T0+1}
        v_mul_f32 v{T0}, {hex(( 127 + CHK) << 23)}, v{T0}
        v_cmp_lt_f32 vcc, v{T0+1}, v{T0}
        s_or_b64 s[46:47], s[46:47], vcc
        v_cmp_lt_u32 vcc, {1 << HR}, v{A+4}
        s_or_b64 s[46:47], s[46:47], vcc
        """)
        for q in range(4): e(f"v_ldexp_f32 v{A+q}, v{A+q}, s30")
        finish_row(j, A)
    for j in range(3): read_row(j)
    e("s_waitcnt lgkmcnt(0)")
    for j in range(3): fast_row(j)
    e(f"s_cmp_lg_u32 s{sWave}, 0\ns_cbranch_scc1 k3_epi3")
    read_row(3); e("s_waitcnt lgkmcnt(0)"); fast_row(3)
    e(f"""
    k3_epi3:
    v_mov_b32 v{T0}, 0
    s_cmp_eq_u64 s[46:47], 0
    s_cbranch_scc1 k3_noflag
    ds_write_b32 v{T0}, v{vOne} offset:{K3_FLAG}
    k3_noflag:
    s_waitcnt lgkmcnt(0)
    s_barrier
    ds_read_b32 v{T0}, v{T0} offset:{K3_FLAG}
    s_waitcnt lgkmcnt(0)
    v_readfirstlane_b32 s31, v{T0}
    s_nop 0
    s_cmp_eq_u32 s31, 0
    s_cbranch_scc1 k3_done
    """)
    sWd = sSbf
    e(f"""
    k3_fallback:
    s_load_dwordx2 s[8:9], s[0:1], 8
    s_load_dwordx2 s[16:17], s[0:1], 16
    s_load_dwordx2 s[20:21], s[0:1], 32
    s_load_dwordx2 s[4:5], s[0:1], 48
    s_load_dwordx2 s[6:7], s[0:1], 72
    s_waitcnt vmcnt(0) lgkmcnt(0)
    s_load_dword s33, s[4:5], 0
    s_load_dwordx8 {sr(sUp,8)}, s[6:7], 0
    s_mov_b32 s10, {T*4}
    s_mov_b32 s11, 0x00020000
    s_mov_b32 s18, {T*4}
    s_mov_b32 s19, 0x00020000
    s_mov_b32 s22, {T*2}
    s_mov_b32 s23, 0x00020000
    """)
    for i in range(4): e(f"v_mov_b32 v{X+i}, 0")
    e(f"v_add_u32 v{T0}, 0xc000, v{vA}")
    for r in range(3): e(f"ds_write_b128 v{vA}, {vr(X,4)} offset:{K3_F64 + r*16384}")
    for r in range(3): e(f"ds_write_b128 v{T0}, {vr(X,4)} offset:{K3_F64 + r*16384}")
    e(f"""
    v_cmpx_gt_u32 vcc, 256, v0
    ds_write_b128 v{T0}, {vr(X,4)} offset:{K3_F64 + 3*16384}
    s_mov_b64 exec, -1
    s_waitcnt lgkmcnt(0)
    s_barrier
    s_lshl_b32 s33, s33, 16
    """)
    unpack_s(e, sWd, sUp, 16)
    e(f"""
    s_mov_b32 s30, 0
    v_lshrrev_b32 v{vQ}, 1, v{vA}
    k3_fbloop:
    buffer_load_dwordx4 {vr(X,4)}, v{vA}, s[16:19], s30 offen
    s_lshr_b32 s29, s30, 1
    s_waitcnt vmcnt(0)
    """)
    for q in range(4):
        x = T0; y = T0 + 4; z = T0 + 8
        e(f"""
        v_bfe_u32 v{x}, v{X+q}, 6, 8
        v_cmpx_eq_u32 vcc, s{sB}, v{x}
        s_cbranch_execz k3_fbskip{q}
        buffer_load_dword v{x}, v{vA}, s[8:11], s30 offen offset:{4*q}
        buffer_load_ushort v{EN}, v{vQ}, s[20:23], s29 offen offset:{2*q}
        s_waitcnt vmcnt(1)
        v_lshlrev_b32 v{x}, 3, v{x}
        buffer_load_dwordx2 {vr(y,2)}, v{x}, s[12:15], 0 offen
        s_waitcnt vmcnt(1)
        v_lshlrev_b32 v{EN}, 16, v{EN}
        v_mul_f32 v{EN}, s33, v{EN}
        v_cvt_pk_bf16_f32 v{EN}, v{EN}, v{EN}
        v_lshlrev_b32 v{EN}, 16, v{EN}
        v_mul_f32 v{EN}, 0.15915494, v{EN}
        v_fract_f32 v{EN}, v{EN}
        v_cos_f32 v{EN}, v{EN}
        v_lshrrev_b32 v{EN+1}, 8, v{X+q}
        v_cvt_pk_bf16_f32 v{EN}, v{EN}, v{EN}
        v_lshlrev_b32 v{EN}, 16, v{EN}
        v_bfi_b32 v{EN+1}, 63, v{X+q}, v{EN+1}
        v_lshlrev_b32 v{EN+1}, 3, v{EN+1}
        v_add_u32 v{EN+2}, {2*25600}, v{EN+1}
        s_waitcnt vmcnt(0)
        v_lshlrev_b32 v{x}, 16, v{y}
        v_and_b32 v{x+1}, 0xffff0000, v{y}
        v_lshlrev_b32 v{x+2}, 16, v{y+1}
        v_and_b32 v{x+3}, 0xffff0000, v{y+1}
        """)
        for h in range(2):
            d = vr(y + 2*h, 2)
            e(f"v_pk_mul_f32 {d}, {vr(x,2)}, {sr(sWd+2*h,2)} op_sel:[0,0] op_sel_hi:[0,1]")
            e(f"v_pk_fma_f32 {d}, {vr(x,2)}, {sr(sWd+4+2*h,2)}, {d} op_sel:[1,0,0] op_sel_hi:[1,1,1]")
            e(f"v_pk_fma_f32 {d}, {vr(x+2,2)}, {sr(sWd+8+2*h,2)}, {d} op_sel:[0,0,0] op_sel_hi:[0,1,1]")
            e(f"v_pk_fma_f32 {d}, {vr(x+2,2)}, {sr(sWd+12+2*h,2)}, {d} op_sel:[1,0,0] op_sel_hi:[1,1,1]")
        rnd2(y, y+1); rnd2(y+2, y+3)
        for c in range(4):
            e(f"v_mul_f32 v{y+c}, v{EN}, v{y+c}\nv_cvt_f64_f32 {vr(z+2*c,2)}, v{y+c}")
        for c in range(4):
            e(f"ds_add_f64 v{EN+1+c//2}, {vr(z+2*c,2)} offset:{K3_F64 + (c%2)*25600}")
        e(f"k3_fbskip{q}:\ns_mov_b64 exec, -1")
    e(f"""
    s_add_u32 s30, s30, 16384
    s_cmp_lt_u32 s30, {T*4}
    s_cbranch_scc1 k3_fbloop
    s_waitcnt lgkmcnt(0)
    s_barrier
    v_add_u32 v{vEnt}, {2*25600}, v{vQ}
    """)
    def slow_row(j):
        for c in range(4):
            e(f"ds_read_b64 {vr(EN+2*c,2)}, v{vQ if c < 2 else vEnt} offset:{K3_F64 + (c%2)*25600 + j*8192}")
        e("s_waitcnt lgkmcnt(0)")
        A = X + 4*j
        for c in range(4): e(f"v_cvt_f32_f64 v{A+c}, {vr(EN+2*c,2)}")
        finish_row(j, A)
    for j in range(3): slow_row(j)
    e(f"s_cmp_lg_u32 s{sWave}, 0\ns_cbranch_scc1 k3_done")
    slow_row(3)
    e("k3_done:\ns_endpgm")
    return e.text(), NV, 102

if __name__ == "__main__":
    which = sys.argv[1] if len(sys.argv) > 1 else "123"
    o = [HEADER]
    ks = []
    if "1" in which: ks.append(("k1_kernel", gen_k1(), NW1, K1_LDS))
    if "2" in which: ks.append(("k2_kernel", gen_k2(), 256, K2_LDS))
    if "3" in which: ks.append(("k3_kernel", gen_k3(), 256, K3_LDS))
    for name, (txt, nv, ns), grid, lds in ks:
        o.append(f"; @launch kernel={name} grid=({grid},1,1) block=(1024,1,1) lds={lds}\n")
    o.append('.amdgcn_target "amdgcn-amd-amdhsa--gfx950"\n.text\n')
    for name, (txt, nv, ns), grid, lds in ks: o.append(txt)
    o.append('.section .rodata,"a"\n')
    for name, (txt, nv, ns), grid, lds in ks: o.append(".p2align 6\n" + kd(name, nv, ns))
    print("".join(o))
```

```python
import os, sys
from common import *
STAMPS = os.environ.get("STAMPS", "0") == "1"
EXP = os.environ.get("EXP", "")
STAMP_OFF = 240 << 20
vS = 127

class Asm:
    def __init__(self):
        self.o = []
        self.stamps = []
        self.vm = []
    def __call__(self, s):
        for line in s.strip("\n").split("\n"):
            line = line.strip()
            if not line: continue
            if line.endswith(":"): self.o.append(line)
            else: self.o.append("    " + line)
    def raw(self, s): self.o.append(s.rstrip("\n"))
    def vmem(self, s, tag):
        self(s); self.vm.append(tag)
    def waitvm(self, tag, keep=False):
        c = [i for i, t in enumerate(self.vm) if t == tag]
        if not c: return
        idx = max(c)
        n = len(self.vm) - 1 - idx
        assert n <= 63
        self(f"s_waitcnt vmcnt({n})")
        self.vm = self.vm[idx + 1:]
    def text(self): return "\n".join(self.o) + "\n"

def stamp(e, name):
    if not STAMPS: return
    idx = len(e.stamps); e.stamps.append(name)
    e(f"s_memrealtime s[100:101]\ns_waitcnt lgkmcnt(0)\nv_writelane_b32 v{vS}, s100, {idx}")
    if name in ("start", "end"):
        e(f"s_memtime s[100:101]\ns_waitcnt lgkmcnt(0)\nv_writelane_b32 v{vS}, s100, {62 if name == 'start' else 63}")
def stamp_out(e, kidx):
    if not STAMPS: return
    e("s_waitcnt vmcnt(0)")
    stamp(e, "end")
    e(f"""
    s_load_dwordx2 s[96:97], s[0:1], 104
    s_mov_b32 s98, 0x10000000
    s_mov_b32 s99, 0x00020000
    s_lshl_b32 s100, s2, 12
    s_add_u32 s100, s100, {STAMP_OFF + kidx * (1 << 20)}
    v_lshlrev_b32 v126, 2, v0
    s_waitcnt lgkmcnt(0)
    buffer_store_dword v{vS}, v126, s[96:99], s100 offen
    """)
    sys.stderr.write(f"STAMPS{kidx} " + " ".join(e.stamps) + "\n")

def vr(a, n): return f"v[{a}:{a+n-1}]"
def sr(a, n): return f"s[{a}:{a+n-1}]"

def wave_scan(e, v, op="v_add_u32"):
    for sh in (1, 2, 4, 8):
        e(f"s_nop 1\n{op}_dpp v{v}, v{v}, v{v} row_shr:{sh} row_mask:0xf bank_mask:0xf")
    e(f"s_nop 1\n{op}_dpp v{v}, v{v}, v{v} row_bcast:15 row_mask:0xa bank_mask:0xf")
    e(f"s_nop 1\n{op}_dpp v{v}, v{v}, v{v} row_bcast:31 row_mask:0xc bank_mask:0xf")

def row_scan(e, vs, ops=None):
    ops = ops or ["v_add_u32"] * len(vs)
    for sh in (1, 2, 4, 8):
        if len(vs) < 3: e(f"s_nop {2-len(vs)}")
        for v, op in zip(vs, ops): e(f"{op}_dpp v{v}, v{v}, v{v} row_shr:{sh} row_mask:0xf bank_mask:0xf")

def add64(e, d, b, off):
    e(f"s_add_u32 s{d}, s{b}, {off}\ns_addc_u32 s{d+1}, s{b+1}, 0")

def unpack_s(e, dst, src, n):
    for i in range(0, n, 2):
        e(f"s_lshl_b32 s{dst+i}, s{src+i//2}, 16\ns_and_b32 s{dst+i+1}, s{src+i//2}, 0xffff0000")

def emit(ks):
    o = [HEADER]
    for name, (txt, nv, ns), grid, blk, lds in ks:
        o.append(f"; @launch kernel={name} grid=({grid},1,1) block=({blk},1,1) lds={lds}\n")
    o.append('.amdgcn_target "amdgcn-amd-amdhsa--gfx950"\n.text\n')
    for name, (txt, nv, ns), grid, blk, lds in ks: o.append(txt)
    o.append('.section .rodata,"a"\n')
    for name, (txt, nv, ns), grid, blk, lds in ks:
        o.append(".p2align 6\n" + kd(name, 128 if STAMPS else nv, 102 if STAMPS else ns))
    print("".join(o))
```

```python
from asmlib import *
G3 = int(os.environ.get("G3", 4))
CAP3 = 512
K3_WTOT = 0; K3_FLAG = 256; K3_DEL = 272; K3_MAP = K3_DEL + 8192 + 16
K3_NENT = CAP3 + 16 * (3 * G3)
K3_ACC = K3_MAP + K3_NENT * 16
AST = 12800
K3_F64 = 512
K3_LDS = max(K3_ACC + 5 * AST, K3_F64 + 4 * 25600)
FB = 7
HR = 9
CHK = 8
MAGIC = 0x4B400000

def gen_k3(g):
    MFMA = g.MFMA; duty = g.duty
    e = Asm()
    e.raw(kstart("k3_kernel"))
    vA, vL16, vMsk, vBase, vOne, vEnt, vQ, vRow = 1, 2, 3, 4, 5, 6, 7, 8
    T0 = 10
    X = 26
    EN = X + 4 * G3
    P = (EN + 4 * G3, EN + 6 * G3)
    DI = EN + 8 * G3
    M = DI + 4
    SR = M + 8
    WU = SR + 32
    NV = WU + 2
    assert NV <= 126, NV
    WS_, WR_ = T0 + 8, T0 + 12
    sWave, sB, sU, sOwnN, sOwnR, sEmin, sRem, sW0, sW1, sRow, sMagic = 3, 35, 36, 38, 39, 40, 41, 43, 44, 45, 42
    sCen, sT = 48, 52
    e("s_cmpk_ge_u32 s2, 256\ns_cbranch_scc1 k3_done")
    stamp(e, "start")
    e(f"""
    s_load_dwordx2 s[6:7], s[0:1], 104
    s_load_dwordx2 s[12:13], s[0:1], 0
    s_load_dwordx2 s[20:21], s[0:1], 24
    s_load_dwordx2 s[24:25], s[0:1], 88
    s_load_dwordx2 s[4:5], s[0:1], 40
    s_load_dwordx4 s[52:55], s[0:1], 56
    s_load_dwordx2 s[56:57], s[0:1], 80
    v_readfirstlane_b32 s3, v0
    s_and_b32 s{sB}, s2, 7
    s_lshl_b32 s{sB}, s{sB}, 5
    s_lshr_b32 s31, s2, 3
    s_add_u32 s{sB}, s{sB}, s31
    s_lshr_b32 s3, s3, 6
    v_lshlrev_b32 v{vA}, 4, v0
    v_and_b32 v{T0+1}, 3, v0
    v_lshrrev_b32 v{T0}, 2, v0
    v_lshlrev_b32 v{T0}, 12, v{T0}
    v_lshl_or_b32 v{T0}, v{T0+1}, 2, v{T0}
    v_and_b32 v{vL16}, 0x3f0, v{vA}
    s_mov_b32 s18, {1<<20}
    s_mov_b32 s19, 0x00020000
    s_lshl_b32 s31, s{sB}, 4
    s_waitcnt lgkmcnt(0)
    """)
    add64(e, 16, 6, g.DIR2)
    vE, vSc = T0 + 4, EN
    e.vmem(f"buffer_load_dword v{vE}, v{T0}, s[16:19], s31 offen", "dir")
    add64(e, 8, 6, g.REC2)
    e(f"""
    s_load_dwordx4 {sr(sCen,4)}, s[4:5], 0
    s_load_dwordx16 s[60:75], s[52:53], 0
    s_load_dwordx16 s[76:91], s[54:55], 0
    s_load_dwordx8 s[92:99], s[56:57], 0
    v_mov_b32 v{vMsk}, 0x00070007
    v_mov_b32 v{vBase}, {K3_ACC}
    v_mov_b32 v{vOne}, 1
    v_lshrrev_b32 v{vRow}, 1, v{vL16}
    v_lshrrev_b32 v{EN+3}, 3, v{vL16}
    s_mov_b32 s{sW0}, {4 | (256 << 16)}
    s_mov_b32 s{sW1}, {32 | (2048 << 16)}
    s_mov_b32 s{sMagic}, {MAGIC}
    s_mov_b32 s14, {E*8}
    s_mov_b32 s15, 0x00020000
    s_mov_b32 s22, {E*2}
    s_mov_b32 s23, 0x00020000
    s_mov_b32 s26, {E*8}
    s_mov_b32 s27, 0x00020000
    s_mov_b32 s10, {g.REC2_SZ}
    s_mov_b32 s11, 0x00020000
    s_lshl_b32 s{sRow}, s{sWave}, 17
    s_lshl_b32 s32, s{sB}, 9
    s_add_u32 s{sRow}, s{sRow}, s32
    """)
    for i in range(4): e(f"v_mov_b32 v{X+i}, 0")
    e(f"v_add_u32 v{T0}, 0x8000, v{vA}")
    zb = 5 * AST
    for r in range(3):
        e(f"ds_write_b128 v{vA if r < 2 else T0}, {vr(X,4)} offset:{K3_ACC + (r if r < 2 else r-2)*16384}")
    e(f"""
    ds_write_b32 v{X}, v{X} offset:{K3_FLAG}
    v_cmpx_gt_u32 vcc, {(zb - 3*16384)//16}, v0
    ds_write_b128 v{T0}, {vr(X,4)} offset:{K3_ACC + 16384}
    v_mov_b32 v{X+6}, 1024
    v_mov_b32 v{X+4}, 0
    v_mov_b32 v{X+5}, 0
    v_cmpx_gt_u32 vcc, {K3_NENT}, v0
    ds_write_b128 v{vA}, {vr(X+4,4)} offset:{K3_MAP}
    v_bfrev_b32 v{X+8}, 1
    v_bfrev_b32 v{X+10}, 1
    v_cmpx_gt_u32 vcc, 513, v0
    ds_write_b128 v{vA}, {vr(X+8,4)} offset:{K3_DEL}
    s_mov_b64 exec, -1
    """)
    assert (zb - 3*16384)//16 >= K3_NENT >= 513
    vN, vF, vRk = T0 + 5, T0 + 6, T0 + 7
    e.waitvm("dir")
    stamp(e, "dir")
    e(f"""
    v_lshrrev_b32 v{T0}, 26, v{vE}
    v_bfe_u32 v{vN}, v{vE}, 13, 13
    s_nop 0
    v_mov_b32_dpp v{T0+1}, v{T0} quad_perm:[1,1,1,1] row_mask:0xf bank_mask:0xf
    v_mov_b32_dpp v{T0+2}, v{T0} quad_perm:[0,0,0,0] row_mask:0xf bank_mask:0xf
    v_lshl_or_b32 v{vSc}, v{T0+1}, 6, v{T0+2}
    v_mov_b32 v{EN+1}, v{vSc}
    """)
    wave_scan(e, EN + 1, "v_min_u32")
    e(f"s_nop 0\nv_readlane_b32 s{sEmin}, v{EN+1}, 63")
    g.map_part1(e, vN, vF, vRk, T0, sWave, sOwnN, sOwnR, K3_WTOT, extra=sEmin)
    e("s_waitcnt lgkmcnt(0)\ns_barrier")
    e(f"s_lshr_b32 s31, s{sRow}, 2")
    for j in range(4):
        e.vmem(f"buffer_load_ushort v{DI+j}, v{EN+3}, s[20:23], s31 offen", "dist")
        if j < 3: e(f"s_add_u32 s31, s31, {16<<15}")
    g.map_part2(e, vN, vF, vRk, T0, vL16, sWave, sOwnN, sOwnR, sU, K3_WTOT, sMin=sEmin)
    e(f"""
    s_cmp_gt_u32 s{sU}, {CAP3*64}
    s_cselect_b32 s{sEmin}, 0, s{sEmin}
    s_cmp_eq_u32 s{sEmin}, 0
    s_cselect_b32 s{sU}, 0, s{sU}
    s_cbranch_scc1 k3_nomap
    v_and_b32 v{vE}, 0x1fff, v{vE}
    v_mul_u32_u24 v{T0}, {g.S2//16}, v0
    v_add_u32 v{vE}, v{vE}, v{T0}
    v_sub_u32 v{vE}, v{vE}, v{vF}
    v_lshlrev_b32 v{T0+2}, 4, v{vE}
    s_add_u32 s31, s{sEmin}, {127 + FB}
    v_sub_u32 v{T0+3}, s31, v{vSc}
    v_max_i32 v{T0+3}, 0, v{T0+3}
    v_lshlrev_b32 v{T0+3}, 23, v{T0+3}
    v_lshlrev_b32 v{T0}, 3, v{vRk}
    v_cmpx_lt_u32 vcc, 0, v{vN}
    ds_write_b64 v{T0}, {vr(T0+2,2)} offset:{K3_DEL}
    """)
    g.map_part3(e, "k3", vN, vF, vRk, T0, K3_MAP)
    e(f"""
    k3_nomap:
    s_lshl_b32 s31, s{sWave}, 4
    v_mov_b32 v{vEnt}, s31
    v_mov_b32 v{vQ}, v{vA}
    s_lshl_b32 s31, s{sWave}, 6
    s_sub_i32 s{sRem}, s{sU}, s31
    s_waitcnt lgkmcnt(0)
    s_barrier
    """)
    stamp(e, "map")
    W = "s_waitcnt lgkmcnt(0)"
    def ent_reads():
        for i in range(G3): e(f"ds_read_b128 {vr(EN+4*i,4)}, v{vEnt} offset:{K3_MAP + i*256}")
        e(f"v_add_u32 v{vEnt}, {G3*256}, v{vEnt}")
    def ranks():
        for i in range(G3):
            e(f"""
            v_mbcnt_lo_u32_b32 v{EN+4*i+2}, v{EN+4*i}, v{EN+4*i+2}
            v_mbcnt_hi_u32_b32 v{EN+4*i+2}, v{EN+4*i+1}, v{EN+4*i+2}
            v_lshlrev_b32 v{EN+4*i+2}, 3, v{EN+4*i+2}
            """)
    def del_reads(s):
        for i in range(G3): e(f"ds_read_b64 {vr(P[s]+2*i,2)}, v{EN+4*i+2} offset:{K3_DEL}")
    def load(s, i):
        return (f"v_add_u32 v{P[s]+2*i}, v{P[s]+2*i}, v{vQ}\nv_add_u32 v{vQ}, 0x4000, v{vQ}\n"
                f"buffer_load_dwordx4 {vr(X+4*i,4)}, v{P[s]+2*i}, s[8:11], 0 offen{g.RDPOL}")
    ent_reads(); e(W); ranks(); del_reads(0); ent_reads(); e(W)
    for i in range(G3): e.vmem(load(0, i), "x")
    stamp(e, "ld0iss")
    ranks(); del_reads(1)
    e(f"s_mov_b32 s31, s{sRow}")
    for j in range(4):
        e.vmem(f"buffer_load_dwordx2 {vr(M+2*j,2)}, v{vRow}, s[12:15], s31 offen", "m")
        if j < 3: e(f"s_add_u32 s31, s31, {16<<17}")
    unpack_s(e, sT, sCen, 8)
    g.sel_consts(e, T0 + 2, T0 + 3)
    g.sel_wT(e, WR_, 60, T0 + 2, T0 + 3, T0); g.sel_wT(e, WR_ + 2, 68, T0 + 2, T0 + 3, T0)
    g.sel_wT(e, WS_, 76, T0 + 2, T0 + 3, T0); g.sel_wT(e, WS_ + 2, 84, T0 + 2, T0 + 3, T0)
    g.sel_wT(e, WU, 92, T0 + 2, T0 + 3, T0)
    e.waitvm("dist")
    stamp(e, "dist")
    def rnd(a): e(f"v_cvt_pk_bf16_f32 v{a}, 0, v{a}")
    def rbf_row(j):
        t = T0
        e(f"v_lshlrev_b32 v{DI+j}, 16, v{DI+j}")
        for r in range(8): e(f"v_subrev_f32 v{t+r}, s{sT+r}, v{DI+j}")
        for r in range(8): rnd(t + r)
        for r in range(8): e(f"v_mul_f32 v{t+r}, v{t+r}, v{t+r}")
        for r in range(8): rnd(t + r)
        for r in range(8): e(f"v_mul_f32 v{t+r}, 0xc1200000, v{t+r}")
        for r in range(8): rnd(t + r)
        for r in range(8): e(f"v_mul_f32 v{t+r}, 0x3fb8aa3b, v{t+r}")
        for r in range(8): e(f"v_exp_f32 v{t+r}, v{t+r}")
        for p in range(4): e(f"v_cvt_pk_bf16_f32 v{t+p}, v{t+2*p}, v{t+2*p+1}")
        S = SR + 8*j
        e(f"""
        s_nop 0
        {MFMA} {vr(S,4)}, {vr(WS_,2)}, {vr(t,2)}, 0
        {MFMA} {vr(S+4,4)}, {vr(WR_,2)}, {vr(t,2)}, 0
        s_nop 0
        {MFMA} {vr(S,4)}, {vr(WS_+2,2)}, {vr(t+2,2)}, {vr(S,4)}
        {MFMA} {vr(S+4,4)}, {vr(WR_+2,2)}, {vr(t+2,2)}, {vr(S+4,4)}
        """)
    for j in range(3): rbf_row(j)
    duty(e, 0, sWave, "k3_rbf3", lambda: rbf_row(3))
    stamp(e, "rbf")
    if "nold" in EXP: e("s_waitcnt vmcnt(0)")
    MAINBAR = "bar" in EXP
    e("s_mov_b32 s30, 1\nk3_loop:")
    for s in range(2):
        for i in range(G3):
            lab = f"{s}_{i}"
            e(f"""
            s_cmp_lt_i32 s{sRem}, 64
            s_cbranch_scc1 k3_part{lab}
            k3_back{lab}:
            """)
            if s == 0:
                pass
            e(f"s_waitcnt vmcnt({G3-1})")
            for h in range(2):
                d = X + 4*i + 2*h; a = T0 + 8 + h; t = T0 + 4*h; x = T0 + 10 + 2*h; f = P[s] + 2*i + 1
                e(f"""
                v_and_b32 v{x}, v{vMsk}, v{d}
                v_and_b32 v{x+1}, v{vMsk}, v{d+1}
                v_dot2_u32_u16 v{a}, v{x}, s{sW0}, v{vBase}
                v_dot2_u32_u16 v{a}, v{x+1}, s{sW1}, v{a}
                v_xor_b32 v{x}, v{x}, v{d}
                v_xor_b32 v{x+1}, v{x+1}, v{d+1}
                v_fma_mix_f32 v{t}, v{x}, v{f}, s{sMagic} op_sel:[0,0,0] op_sel_hi:[1,0,0]
                v_fma_mix_f32 v{t+1}, v{x}, v{f}, s{sMagic} op_sel:[1,0,0] op_sel_hi:[1,0,0]
                v_fma_mix_f32 v{t+2}, v{x+1}, v{f}, s{sMagic} op_sel:[0,0,0] op_sel_hi:[1,0,0]
                v_fma_mix_f32 v{t+3}, v{x+1}, v{f}, s{sMagic} op_sel:[1,0,0] op_sel_hi:[1,0,0]
                """)
            if i == 0: e(W)
            if "nold" not in EXP: e(load(1 - s, i))
            if i == 0: ent_reads()
            if i == G3 - 1:
                e(W); ranks(); del_reads(s)
            for h in range(2):
                if "noat" in EXP: continue
                for q in range(4): e(f"ds_add_u32 v{T0+8+h}, v{T0+4*h+q} offset:{q*AST}")
                e(f"ds_add_u32 v{T0+8+h}, v{vOne} offset:{4*AST}")
            e(f"s_sub_i32 s{sRem}, s{sRem}, 1024")
    e("s_branch k3_loop")
    for s in range(2):
        for i in range(G3):
            lab = f"{s}_{i}"
            e(f"""
            k3_part{lab}:
            s_cmp_lt_i32 s{sRem}, 1
            s_cbranch_scc1 k3_loopdone
            s_bfm_b64 exec, s{sRem}, 0
            s_branch k3_back{lab}
            """)
    e(f"""
    k3_loopdone:
    s_mov_b64 exec, -1
    s_waitcnt vmcnt(0) lgkmcnt(0)
    """)
    stamp(e, "loopend")
    e("s_barrier")
    stamp(e, "bar")
    e(f"s_cmp_eq_u32 s{sEmin}, 0\ns_cbranch_scc1 k3_fallback")
    e.vm = []
    def finish_rows(rows, Aof):
        U = {j: T0 + 4*n for n, j in enumerate(rows)}
        for j in rows:
            A = Aof(j); S = SR + 8*j
            for q in range(4): e(f"v_mul_f32 v{A+q}, v{A+q}, v{S+q}")
            e(f"v_cvt_pk_bf16_f32 v{A}, v{A}, v{A+1}\nv_cvt_pk_bf16_f32 v{A+1}, v{A+2}, v{A+3}")
        e("s_nop 1")
        for j in rows: e(f"{MFMA} {vr(U[j],4)}, {vr(WU,2)}, {vr(Aof(j),2)}, 0")
        for j in rows:
            A = Aof(j); R = SR + 8*j + 4
            e(f"""
            v_lshlrev_b32 v{A}, 16, v{M+2*j}
            v_and_b32 v{A+1}, 0xffff0000, v{M+2*j}
            v_lshlrev_b32 v{A+2}, 16, v{M+2*j+1}
            v_and_b32 v{A+3}, 0xffff0000, v{M+2*j+1}
            """)
            for q in range(4): rnd(R + q)
        for j in rows:
            A = Aof(j); R = SR + 8*j + 4; u = U[j]
            for q in range(4): rnd(u + q)
            for q in range(4): e(f"v_mul_f32 v{u+q}, v{u+q}, v{R+q}")
            for q in range(4): rnd(u + q)
            for q in range(4): e(f"v_add_f32 v{A+q}, v{A+q}, v{u+q}")
            e(f"""
            v_cvt_pk_bf16_f32 v{A}, v{A}, v{A+1}
            v_cvt_pk_bf16_f32 v{A+1}, v{A+2}, v{A+3}
            s_add_u32 s31, s{sRow}, {j*(16<<17)}
            buffer_store_dwordx2 {vr(A,2)}, v{vRow}, s[24:27], s31 offen
            """)
    vAd = vEnt
    e(f"v_lshl_add_u32 v{vAd}, v0, 2, v{vBase}\ns_sub_i32 s30, {127 - FB}, s{sEmin}\ns_mov_b64 s[46:47], 0")
    Afast = lambda j: X + 6*j
    def read_row(j):
        for q in range(5): e(f"ds_read_b32 v{X+6*j+q}, v{vAd} offset:{q*AST + j*4096 + 256}")
    def fast_row(j):
        A = X + 6*j
        e(f"v_mul_lo_u32 v{T0}, v{A+4}, s{sMagic}")
        for q in range(4): e(f"v_sub_u32 v{A+q}, v{A+q}, v{T0}")
        for q in range(4): e(f"v_cvt_f32_i32 v{A+q}, v{A+q}")
        e(f"""
        v_cvt_f32_u32 v{T0}, v{A+4}
        v_max3_f32 v{T0+1}, |v{A}|, |v{A+1}|, |v{A+2}|
        v_max_f32 v{T0+1}, |v{A+3}|, v{T0+1}
        v_mul_f32 v{T0}, {hex((127 + CHK) << 23)}, v{T0}
        v_cmp_lt_f32 vcc, v{T0+1}, v{T0}
        s_or_b64 s[46:47], s[46:47], vcc
        v_cmp_lt_u32 vcc, {1 << HR}, v{A+4}
        s_or_b64 s[46:47], s[46:47], vcc
        """)
        for q in range(4): e(f"v_ldexp_f32 v{A+q}, v{A+q}, s30")
    for j in range(3): read_row(j)
    for j in range(3):
        e(f"s_waitcnt lgkmcnt({5*(2-j)})"); fast_row(j)
    finish_rows([0, 1, 2], Afast)
    def last():
        read_row(3); e(W); fast_row(3); finish_rows([3], Afast)
    duty(e, 0, sWave, "k3_epi3", last)
    stamp(e, "epi")
    stamp_out(e, 2)
    e(f"""
    v_mov_b32 v{T0}, 0
    s_cmp_eq_u64 s[46:47], 0
    s_cbranch_scc1 k3_noflag
    ds_write_b32 v{T0}, v{vOne} offset:{K3_FLAG}
    k3_noflag:
    s_waitcnt lgkmcnt(0)
    s_barrier
    ds_read_b32 v{T0}, v{T0} offset:{K3_FLAG}
    s_waitcnt lgkmcnt(0)
    v_readfirstlane_b32 s31, v{T0}
    s_nop 0
    s_cmp_eq_u32 s31, 0
    s_cbranch_scc1 k3_done
    """)
    if "noat" in EXP or "nold" in EXP: e("s_branch k3_done")
    sWd = 72
    e(f"""
    k3_fallback:
    s_load_dwordx2 s[8:9], s[0:1], 8
    s_load_dwordx2 s[16:17], s[0:1], 16
    s_load_dwordx2 s[20:21], s[0:1], 32
    s_load_dwordx2 s[4:5], s[0:1], 48
    s_load_dwordx2 s[6:7], s[0:1], 72
    s_waitcnt vmcnt(0) lgkmcnt(0)
    s_load_dword s33, s[4:5], 0
    s_load_dwordx8 s[52:59], s[6:7], 0
    s_mov_b32 s10, {T*4}
    s_mov_b32 s11, 0x00020000
    s_mov_b32 s18, {T*4}
    s_mov_b32 s19, 0x00020000
    s_mov_b32 s22, {T*2}
    s_mov_b32 s23, 0x00020000
    """)
    for i in range(4): e(f"v_mov_b32 v{X+i}, 0")
    e(f"v_add_u32 v{T0}, 0xc000, v{vA}")
    for r in range(3): e(f"ds_write_b128 v{vA}, {vr(X,4)} offset:{K3_F64 + r*16384}")
    for r in range(3): e(f"ds_write_b128 v{T0}, {vr(X,4)} offset:{K3_F64 + r*16384}")
    e(f"""
    v_cmpx_gt_u32 vcc, 256, v0
    ds_write_b128 v{T0}, {vr(X,4)} offset:{K3_F64 + 3*16384}
    s_mov_b64 exec, -1
    s_waitcnt lgkmcnt(0)
    s_barrier
    s_lshl_b32 s33, s33, 16
    """)
    unpack_s(e, sWd, 52, 16)
    e(f"""
    s_mov_b32 s30, 0
    v_lshrrev_b32 v{vQ}, 1, v{vA}
    k3_fbloop:
    buffer_load_dwordx4 {vr(X,4)}, v{vA}, s[16:19], s30 offen
    s_lshr_b32 s29, s30, 1
    s_waitcnt vmcnt(0)
    """)
    for q in range(4):
        x = T0; y = T0 + 4; z = T0 + 8
        e(f"""
        v_bfe_u32 v{x}, v{X+q}, 6, 8
        v_cmpx_eq_u32 vcc, s{sB}, v{x}
        s_cbranch_execz k3_fbskip{q}
        buffer_load_dword v{x}, v{vA}, s[8:11], s30 offen offset:{4*q}
        buffer_load_ushort v{EN}, v{vQ}, s[20:23], s29 offen offset:{2*q}
        s_waitcnt vmcnt(1)
        v_lshlrev_b32 v{x}, 3, v{x}
        buffer_load_dwordx2 {vr(y,2)}, v{x}, s[12:15], 0 offen
        s_waitcnt vmcnt(1)
        v_lshlrev_b32 v{EN}, 16, v{EN}
        v_mul_f32 v{EN}, s33, v{EN}
        v_cvt_pk_bf16_f32 v{EN}, 0, v{EN}
        v_mul_f32 v{EN}, 0.15915494, v{EN}
        v_fract_f32 v{EN}, v{EN}
        v_cos_f32 v{EN}, v{EN}
        v_lshrrev_b32 v{EN+1}, 8, v{X+q}
        v_cvt_pk_bf16_f32 v{EN}, 0, v{EN}
        v_bfi_b32 v{EN+1}, 63, v{X+q}, v{EN+1}
        v_lshlrev_b32 v{EN+1}, 3, v{EN+1}
        v_add_u32 v{EN+2}, {2*25600}, v{EN+1}
        s_waitcnt vmcnt(0)
        v_lshlrev_b32 v{x}, 16, v{y}
        v_and_b32 v{x+1}, 0xffff0000, v{y}
        v_lshlrev_b32 v{x+2}, 16, v{y+1}
        v_and_b32 v{x+3}, 0xffff0000, v{y+1}
        """)
        for h in range(2):
            d = vr(y + 2*h, 2)
            e(f"v_pk_mul_f32 {d}, {vr(x,2)}, {sr(sWd+2*h,2)} op_sel:[0,0] op_sel_hi:[0,1]")
            e(f"v_pk_fma_f32 {d}, {vr(x,2)}, {sr(sWd+4+2*h,2)}, {d} op_sel:[1,0,0] op_sel_hi:[1,1,1]")
            e(f"v_pk_fma_f32 {d}, {vr(x+2,2)}, {sr(sWd+8+2*h,2)}, {d} op_sel:[0,0,0] op_sel_hi:[0,1,1]")
            e(f"v_pk_fma_f32 {d}, {vr(x+2,2)}, {sr(sWd+12+2*h,2)}, {d} op_sel:[1,0,0] op_sel_hi:[1,1,1]")
        for c in range(4): rnd(y + c)
        for c in range(4):
            e(f"v_mul_f32 v{y+c}, v{EN}, v{y+c}\nv_cvt_f64_f32 {vr(z+2*c,2)}, v{y+c}")
        for c in range(4):
            e(f"ds_add_f64 v{EN+1+c//2}, {vr(z+2*c,2)} offset:{K3_F64 + (c%2)*25600}")
        e(f"k3_fbskip{q}:\ns_mov_b64 exec, -1")
    e(f"""
    s_add_u32 s30, s30, 16384
    s_cmp_lt_u32 s30, {T*4}
    s_cbranch_scc1 k3_fbloop
    s_waitcnt lgkmcnt(0)
    s_barrier
    v_add_u32 v{vEnt}, {2*25600}, v{vQ}
    """)
    def slow_row(j):
        for c in range(4):
            e(f"ds_read_b64 {vr(EN+2*c,2)}, v{vQ if c < 2 else vEnt} offset:{K3_F64 + (c%2)*25600 + j*8192}")
        e(W)
        for c in range(4): e(f"v_cvt_f32_f64 v{X+c}, {vr(EN+2*c,2)}")
        finish_rows([j], lambda j: X)
        e("s_nop 1")
    for j in range(3): slow_row(j)
    e(f"s_cmp_lg_u32 s{sWave}, 0\ns_cbranch_scc1 k3_done")
    slow_row(3)
    e("k3_done:\ns_endpgm")
    return e.text(), NV, 100
```

```python
from asmlib import *

NW1   = 250
TPW   = 4
TILE  = 12800
S1    = TILE * 6 + 256 * 6
NT1   = NW1 * TPW
REC1  = 0
REC1_SZ = NT1 * S1
DIR1  = (REC1_SZ + 0xFFFFF) & ~0xFFFFF
DIR2  = DIR1 + (1 << 20)
CB2   = 104
S2    = (CB2 * 128 + 256) * 8
REC2  = DIR2 + (1 << 20)
REC2_SZ = 1024 * S2
assert REC2 + REC2_SZ <= STAMP_OFF
LDPOL = os.environ.get("LDPOL", " nt")
STPOL = os.environ.get("STPOL", " sc1")
RDPOL = os.environ.get("RDPOL", "")

def duty(e, wave, sWave, label, body):
    e(f"s_cmp_lg_u32 s{sWave}, {wave}\ns_cbranch_scc1 {label}")
    body()
    e(f"{label}:")

K1_CNT = (0, 1024); K1_BASE = 2048; K1_DIRB = 3072; K1_BUF = 7168; K1_LDS = K1_BUF + S1

def gen_k1():
    e = Asm()
    e.raw(kstart("k1_kernel"))
    vA, vB, vC, vD, vL16, vSix, vFreq, vRd2 = 1, 2, 3, 4, 5, 6, 7, 8
    T0 = 10
    IN = 20; OUT = 34; ANG = 48
    D = 56; CA = 70; RK = 84; CS = 98
    RO = 106
    NV = 126
    sWave = 3
    e(f"s_cmpk_ge_u32 s2, {NW1}\ns_cbranch_scc1 k1_done")
    stamp(e, "start")
    e(f"""
    s_load_dwordx2 s[8:9], s[0:1], 8
    s_load_dwordx2 s[12:13], s[0:1], 16
    s_load_dwordx2 s[16:17], s[0:1], 32
    s_load_dwordx2 s[4:5], s[0:1], 48
    s_load_dwordx2 s[20:21], s[0:1], 104
    v_readfirstlane_b32 s3, v0
    v_lshlrev_b32 v{vA}, 4, v0
    v_lshlrev_b32 v{vB}, 3, v0
    v_and_b32 v{T0}, 0x200, v0
    v_lshlrev_b32 v{T0}, 21, v{T0}
    v_lshl_or_b32 v{vC}, v0, 2, v{T0}
    v_lshl_or_b32 v{vD}, v0, 1, v{T0}
    v_and_b32 v{vL16}, 0x3f0, v{vA}
    v_mov_b32 v{vSix}, 6
    v_add_u32 v{vRd2}, 0x8000, v{vA}
    v_mov_b32 v{T0}, 0
    v_mov_b32 v{T0+1}, 0
    v_mov_b32 v{T0+2}, 0
    v_mov_b32 v{T0+3}, 0
    ds_write_b128 v{vL16}, {vr(T0,4)} offset:{K1_CNT[0]}
    s_lshr_b32 s3, s3, 6
    s_mov_b32 s10, {T*4}
    s_mov_b32 s11, 0x00020000
    s_mov_b32 s14, {T*4}
    s_mov_b32 s15, 0x00020000
    s_mov_b32 s18, {T*2}
    s_mov_b32 s19, 0x00020000
    s_mov_b32 s23, 0x00020000
    s_mul_i32 s28, s2, {TPW*TILE*4}
    s_lshr_b32 s29, s28, 1
    s_mul_i32 s30, s2, {TPW*S1}
    s_waitcnt lgkmcnt(0)
    s_load_dword s6, s[4:5], 0
    """)
    def loads(k, r):
        if k >= TPW: return
        bi = k * TILE * 4 + r * 16384
        e(f"s_add_u32 s31, s28, {bi}\ns_add_u32 s32, s29, {bi//2}")
        if r < 3:
            e.vmem(f"buffer_load_dwordx4 {vr(IN+4*r,4)}, v{vA}, s[8:11], s31 offen{LDPOL}", ("L",k,r))
            e.vmem(f"buffer_load_dwordx4 {vr(OUT+4*r,4)}, v{vA}, s[12:15], s31 offen{LDPOL}", ("L",k,r))
            e.vmem(f"buffer_load_dwordx2 {vr(ANG+2*r,2)}, v{vB}, s[16:19], s32 offen{LDPOL}", ("L",k,r))
        else:
            e.vmem(f"buffer_load_dword v{IN+12}, v{vC}, s[8:11], s31 offen{LDPOL}", ("L",k,r))
            e.vmem(f"buffer_load_dword v{OUT+12}, v{vC}, s[12:15], s31 offen{LDPOL}", ("L",k,r))
            e.vmem(f"buffer_load_ushort v{ANG+6}, v{vD}, s[16:19], s32 offen{LDPOL}", ("L",k,r))
    loads(0, 0)
    e("s_barrier")
    loads(0, 1)
    add64(e, 24, 20, DIR1)
    e(f"""
    s_mov_b32 s26, {NW1*4096}
    s_mov_b32 s27, 0x00020000
    s_waitcnt lgkmcnt(0)
    s_lshl_b32 s6, s6, 16
    v_mov_b32 v{vFreq}, s6
    """)
    def idx_ops(j):
        e(f"""
        v_lshrrev_b32 v{CA+j}, 4, v{IN+j}
        v_lshrrev_b32 v{D+j}, 8, v{IN+j}
        v_and_b32 v{CA+j}, 0x3fc, v{CA+j}
        v_bfi_b32 v{D+j}, 63, v{IN+j}, v{D+j}
        v_lshl_add_u32 v{D+j}, v{D+j}, 20, v{OUT+j}
        """)
    def cos_pairs(ps):
        t = {p: T0 + 2*i for i, p in enumerate(ps)}
        def each(f):
            for p in ps: e(f(p, t[p], t[p]+1))
        each(lambda p,a,b: f"v_lshlrev_b32 v{a}, 16, v{ANG+p}\nv_and_b32 v{b}, 0xffff0000, v{ANG+p}")
        each(lambda p,a,b: f"v_mul_f32 v{a}, v{vFreq}, v{a}\nv_mul_f32 v{b}, v{vFreq}, v{b}")
        each(lambda p,a,b: f"v_cvt_pk_bf16_f32 v{a}, 0, v{a}\nv_cvt_pk_bf16_f32 v{b}, 0, v{b}")
        each(lambda p,a,b: f"v_mul_f32 v{a}, 0.15915494, v{a}\nv_mul_f32 v{b}, 0.15915494, v{b}")
        each(lambda p,a,b: f"v_fract_f32 v{a}, v{a}\nv_fract_f32 v{b}, v{b}")
        each(lambda p,a,b: f"v_cos_f32 v{a}, v{a}\nv_cos_f32 v{b}, v{b}")
        e("s_nop 0")
        each(lambda p,a,b: f"v_cvt_pk_bf16_f32 v{a}, 0, v{a}\nv_cvt_pk_bf16_f32 v{b}, 0, v{b}")
        each(lambda p,a,b: f"v_cvt_pkrtz_f16_f32 v{CS+p}, v{a}, v{b}")
    def ro_reads():
        for r in range(5):
            e(f"ds_read_b128 {vr(RO+4*r,4)}, v{vA if r < 2 else vRd2} offset:{K1_BUF + (r if r < 2 else r-2)*16384}")
    def store(k, r):
        e(f"s_add_u32 s31, s34, {r*16384}")
        e.vmem(f"buffer_store_dwordx4 {vr(RO+4*r,4)}, v{vA}, s[20:23], s31 offen{STPOL}", ("S", k))
    for k in range(TPW):
        cnt = K1_CNT[k & 1]; cnt_o = K1_CNT[(k + 1) & 1]
        if k > 0: ro_reads()
        loads(k, 2); loads(k, 3)
        sts = {0: (0, 1), 1: (2, 3), 2: (4,)}
        for r in range(3):
            e.waitvm(("L", k, r))
            if r == 0: stamp(e, f"ld0_{k}")
            for j in range(4*r, 4*r+4): idx_ops(j)
            if r == 0 and k > 0: e("s_waitcnt lgkmcnt(0)")
            for j in range(4*r, 4*r+4):
                e(f"ds_add_rtn_u32 v{RK+j}, v{CA+j}, v{vSix} offset:{cnt}")
            cos_pairs([2*r, 2*r+1])
            if k > 0:
                for q in sts[r]: store(k - 1, q)
        e.waitvm(("L", k, 3))
        e(f"s_cmp_ge_u32 s{sWave}, 8\ns_cbranch_scc1 k1_s13a_{k}")
        idx_ops(12)
        e(f"ds_add_rtn_u32 v{RK+12}, v{CA+12}, v{vSix} offset:{cnt}")
        cos_pairs([6])
        e(f"k1_s13a_{k}:")
        loads(k + 1, 0)
        stamp(e, f"p1e_{k}")
        e("s_waitcnt lgkmcnt(0)\ns_barrier")
        stamp(e, f"b1_{k}")
        c = T0; cp = T0 + 4; sc = T0 + 8; tt = T0 + 9; b = RO
        e(f"ds_read_b128 {vr(c,4)}, v{vL16} offset:{cnt}\ns_waitcnt lgkmcnt(0)")
        for i in range(4): e(f"v_and_b32 v{cp+i}, 2, v{c+i}")
        for i in range(4): e(f"v_mad_u32_u24 v{cp+i}, v{cp+i}, 3, v{c+i}")
        e(f"v_add_u32 v{tt}, v{cp}, v{cp+1}\nv_add3_u32 v{tt}, v{tt}, v{cp+2}, v{cp+3}\nv_mov_b32 v{sc}, v{tt}")
        wave_scan(e, sc)
        e(f"""
        v_sub_u32 v{b}, v{sc}, v{tt}
        v_readlane_b32 s33, v{sc}, 63
        v_add_u32 v{b}, 2, v{b}
        v_add_u32 v{b+1}, v{b}, v{cp}
        v_add_u32 v{b+2}, v{b+1}, v{cp+1}
        v_add_u32 v{b+3}, v{b+2}, v{cp+2}
        ds_write_b128 v{vL16}, {vr(b,4)} offset:{K1_BASE}
        s_add_u32 s34, s30, {k*S1}
        s_add_u32 s33, s33, 127
        s_and_b32 s33, s33, 0xffffff80
        s_add_u32 s22, s34, s33
        """)
        for j in range(12):
            e(f"ds_read_b32 v{CA+j}, v{CA+j} offset:{K1_BASE}")
        e(f"s_cmp_ge_u32 s{sWave}, 8\ns_cbranch_scc1 k1_s13r_{k}")
        e(f"ds_read_b32 v{CA+12}, v{CA+12} offset:{K1_BASE}")
        e(f"s_branch k1_dutyC_{k}\nk1_s13r_{k}:")
        def dA():
            for i in range(4):
                e(f"v_lshrrev_b32 v{b+i}, 2, v{b+i}\nv_lshl_or_b32 v{b+i}, v{cp+i}, 14, v{b+i}")
            e(f"ds_write_b128 v{vL16}, {vr(b,4)} offset:{K1_DIRB + k*1024}")
        duty(e, 15, sWave, f"k1_dutyA_{k}", dA)
        def dB():
            for i in range(4):
                e(f"""
                v_lshlrev_b32 v{tt}, 4, v{vL16}
                v_add_u32 v{tt}, {(63<<14) + i*64}, v{tt}
                v_add_u32 v{sc}, v{b+i}, v{c+i}
                v_cmpx_ne_u32 vcc, v{cp+i}, v{c+i}
                ds_write_b32 v{sc}, v{tt} offset:{K1_BUF}
                s_mov_b64 exec, -1
                """)
        duty(e, 14, sWave, f"k1_dutyB_{k}", dB)
        def dC():
            if k + 1 < TPW:
                for i in range(4): e(f"v_mov_b32 v{c+i}, 0")
                e(f"ds_write_b128 v{vL16}, {vr(c,4)} offset:{cnt_o}")
        duty(e, 13, sWave, f"k1_dutyC_{k}", dC)
        e("s_waitcnt lgkmcnt(0)")
        def scat(j):
            e(f"""
            v_add_u32 v{RK+j}, v{RK+j}, v{CA+j}
            v_and_b32 v{CA+j}, -4, v{RK+j}
            v_sub_u32 v{tt}, v{RK+j}, v{CA+j}
            v_lshl_add_u32 v{RK+j}, v{tt}, 1, v{RK+j}
            ds_write_b32 v{CA+j}, v{D+j} offset:{K1_BUF}
            ds_write_b16{'_d16_hi' if j & 1 else ''} v{RK+j}, v{CS+j//2} offset:{K1_BUF-2}
            """)
        R1POS = int(os.environ.get("R1POS", 6))
        for j in range(12):
            if j == R1POS: loads(k + 1, 1)
            scat(j)
        e(f"s_cmp_ge_u32 s{sWave}, 8\ns_cbranch_scc1 k1_s13b_{k}")
        scat(12)
        e(f"k1_s13b_{k}:")
        if R1POS >= 12: loads(k + 1, 1)
        e("s_waitcnt lgkmcnt(0)\ns_barrier")
        stamp(e, f"b2_{k}")
    ro_reads()
    for r in range(5):
        e(f"s_waitcnt lgkmcnt({4-r})"); store(TPW - 1, r)
    e(f"""
    s_cmp_lt_u32 s{sWave}, 12
    s_cbranch_scc1 k1_fin
    v_and_b32 v{T0+4}, 0x3fc, v{vC}
    v_and_b32 v{T0+5}, 0xff0, v{vA}
    s_lshl_b32 s31, s2, 12
    """)
    for k in range(TPW): e(f"ds_read_b32 v{T0+k}, v{T0+4} offset:{K1_DIRB + k*1024}")
    e(f"""
    s_waitcnt lgkmcnt(0)
    buffer_store_dwordx4 {vr(T0,4)}, v{T0+5}, s[24:27], s31 offen{STPOL}
    k1_fin:
    """)
    stamp_out(e, 0)
    e("k1_done:\ns_endpgm")
    return e.text(), NV, 40

def map_part1(e, vN, vScan, vRk, t, sWave, sOwnN, sOwnR, WTOT, extra=None):
    e(f"""
    v_cmp_lt_u32 vcc, 0, v{vN}
    v_mov_b32 v{vScan}, v{vN}
    s_nop 0
    v_mbcnt_lo_u32_b32 v{vRk}, vcc_lo, 0
    v_mbcnt_hi_u32_b32 v{vRk}, vcc_hi, v{vRk}
    s_bcnt1_i32_b64 s{sOwnR}, vcc
    """)
    wave_scan(e, vScan)
    e(f"""
    s_lshl_b32 s31, s{sWave}, 4
    v_readlane_b32 s{sOwnN}, v{vScan}, 63
    v_mov_b32 v{t+2}, s31
    v_mov_b32 v{t+1}, s{sOwnR}
    v_mov_b32 v{t}, s{sOwnN}
    ds_write_b64 v{t+2}, {vr(t,2)} offset:{WTOT}
    """)
    if extra is not None:
        e(f"v_mov_b32 v{t+3}, s{extra}\nds_write_b32 v{t+2}, v{t+3} offset:{WTOT+8}")

def map_part2(e, vN, vScan, vRk, t, vL16, sWave, sOwnN, sOwnR, sU, WTOT, sMin=None):
    e(f"""
    v_and_b32 v{t}, 0xf0, v{vL16}
    ds_read_b128 {vr(t,4)}, v{t} offset:{WTOT}
    s_waitcnt lgkmcnt(0)
    """)
    if sMin is None: row_scan(e, [t, t+1])
    else: row_scan(e, [t, t+1, t+2], ["v_add_u32", "v_add_u32", "v_min_u32"])
    e(f"""
    v_sub_u32 v{vScan}, v{vScan}, v{vN}
    v_readlane_b32 s{sU}, v{t}, 15
    v_readlane_b32 s31, v{t}, s{sWave}
    v_readlane_b32 s32, v{t+1}, s{sWave}
    """)
    if sMin is not None: e(f"v_readlane_b32 s{sMin}, v{t+2}, 15")
    e(f"""
    s_sub_u32 s31, s31, s{sOwnN}
    s_sub_u32 s32, s32, s{sOwnR}
    v_add_u32 v{vScan}, s31, v{vScan}
    v_add_u32 v{vRk}, s32, v{vRk}
    """)

def map_part3(e, pfx, vN, vF, vRk, t, MAP):
    e(f"""
    v_add_u32 v{t}, v{vF}, v{vN}
    v_add_u32 v{t+1}, -1, v{t}
    v_lshrrev_b32 v{t+2}, 2, v{t+1}
    v_and_b32 v{t+2}, -16, v{t+2}
    v_lshrrev_b32 v{t+3}, 3, v{t+1}
    v_and_or_b32 v{t+2}, v{t+3}, 4, v{t+2}
    v_lshlrev_b32 v{t+1}, v{t+1}, 1
    ds_or_b32 v{t+2}, v{t+1} offset:{MAP}
    v_add_u32 v{t+1}, 63, v{vF}
    v_and_b32 v{t+1}, 0xffffffc0, v{t+1}
    {pfx}_rloop:
    v_cmpx_lt_u32 vcc, v{t+1}, v{t}
    s_cbranch_execz {pfx}_rdone
    v_lshrrev_b32 v{t+2}, 2, v{t+1}
    ds_write_b32 v{t+2}, v{vRk} offset:{MAP+8}
    v_add_u32 v{t+1}, 64, v{t+1}
    s_branch {pfx}_rloop
    {pfx}_rdone:
    s_mov_b64 exec, -1
    """)

def sel_wT(e, dst, sW, vSel, vHi, t):
    for p in range(2):
        for k in range(2):
            r = sW + 4*p + 2*k
            e(f"v_mov_b32 v{t+k}, s{r}\nv_bfi_b32 v{t+k}, v{vHi}, s{r+1}, v{t+k}")
        e(f"v_perm_b32 v{dst+p}, v{t+1}, v{t}, v{vSel}")

def sel_consts(e, vSel, vHi):
    e(f"""
    v_bfe_i32 v{vSel}, v0, 0, 1
    v_bfe_i32 v{vHi}, v0, 1, 1
    v_and_b32 v{vSel}, 0x02020202, v{vSel}
    v_add_u32 v{vSel}, 0x05040100, v{vSel}
    """)

MFMA = "v_mfma_f32_4x4x4_16b_bf16"

K2_CNT = (0, 1024); K2_BASE = 2048; K2_WTOT = 3072; K2_DIRB = 3328; K2_DEL = K2_DIRB + 4096; K2_MAP = K2_DEL + 4096
K2_TAB = K2_MAP + 4 * CB2 * 16 + 112 * 16
K2_BUF = K2_TAB + 3136 * 8
K2_LDS = K2_BUF + S2
assert K2_BUF % 16 == 0 and K2_LDS <= 163840 and K2_BUF < 65536 - 16384

def gen_k2():
    e = Asm()
    e.raw(kstart("k2_kernel"))
    vA, vA2, vL16, vEight, vQ, vEnt, vA3 = 1, 2, 3, 4, 5, 6, 7
    T0 = 8
    vA4 = 18
    RAW = 20
    V = 48
    CA = 76; RK = 90
    RO = 104
    NV = 120
    sWave, sB, sU, sCB, sOwnN, sOwnR, sMsk, sBias = 3, 35, 36, 37, 38, 39, 40, 41
    MK = (42, 56)
    e(f"s_cmpk_ge_u32 s2, 256\ns_cbranch_scc1 k2_done")
    stamp(e, "start")
    e(f"""
    s_load_dwordx2 s[8:9], s[0:1], 104
    s_load_dwordx2 s[12:13], s[0:1], 0
    s_load_dwordx2 s[4:5], s[0:1], 72
    v_readfirstlane_b32 s3, v0
    s_and_b32 s{sB}, s2, 7
    s_lshl_b32 s{sB}, s{sB}, 5
    s_lshr_b32 s31, s2, 3
    s_add_u32 s{sB}, s{sB}, s31
    s_lshr_b32 s3, s3, 6
    v_lshlrev_b32 v{vA}, 4, v0
    v_and_b32 v{T0+1}, 3, v0
    v_lshrrev_b32 v{T0}, 2, v0
    v_lshlrev_b32 v{T0}, 12, v{T0}
    v_lshl_or_b32 v{T0}, v{T0+1}, 2, v{T0}
    v_and_b32 v{vL16}, 0x3f0, v{vA}
    s_lshl_b32 s31, s{sB}, 4
    s_mov_b32 s18, {NW1*4096}
    s_mov_b32 s19, 0x00020000
    s_waitcnt lgkmcnt(0)
    """)
    add64(e, 16, 8, DIR1)
    vE = T0 + 4
    e.vmem(f"buffer_load_dword v{vE}, v{T0}, s[16:19], s31 offen", "dir")
    e(f"""
    v_add_u32 v{vA2}, 0x8000, v{vA}
    v_add_u32 v{vA3}, 0x10000, v{vA}
    v_add_u32 v{vA4}, 0x18000, v{vA}
    v_mov_b32 v{vEight}, 8
    s_load_dwordx8 s[72:79], s[4:5], 0
    v_lshrrev_b32 v{RO+1}, 1, v{vL16}
    s_mov_b32 s{sMsk}, 0x00070007
    s_mov_b32 s{sBias}, 0x10000
    s_mov_b32 s14, {E*8}
    s_mov_b32 s15, 0x00020000
    s_mov_b32 s10, {REC1_SZ}
    s_mov_b32 s11, 0x00020000
    """)
    add64(e, 20, 8, REC2)
    add64(e, 24, 8, DIR2)
    e(f"""
    s_mov_b32 s23, 0x00020000
    s_mov_b32 s26, {1<<20}
    s_mov_b32 s27, 0x00020000
    s_mul_i32 s30, s{sB}, {4*S2}
    v_mov_b32 v{V}, 0
    v_mov_b32 v{V+1}, 0
    v_mov_b32 v{V+2}, 0
    v_mov_b32 v{V+3}, 0
    ds_write_b128 v{vL16}, {vr(V,4)} offset:{K2_CNT[0]}
    v_cmpx_gt_u32 vcc, {(K2_TAB-K2_MAP)//16}, v0
    ds_write_b128 v{vA}, {vr(V,4)} offset:{K2_MAP}
    s_mov_b64 exec, -1
    """)
    vN, vF, vRk = T0 + 5, T0 + 6, T0 + 7
    e.waitvm("dir")
    stamp(e, "dir")
    e(f"""
    v_lshrrev_b32 v{vN}, 16, v{vE}
    v_mul_u32_u24 v{vN}, 21846, v{vN}
    v_lshrrev_b32 v{vN}, 16, v{vN}
    """)
    map_part1(e, vN, vF, vRk, T0, sWave, sOwnN, sOwnR, K2_WTOT)
    e("s_waitcnt lgkmcnt(0)\ns_barrier")
    M = CA; WD = CA + 8
    e(f"s_lshl_b32 s31, s{sWave}, 17\ns_lshl_b32 s32, s{sB}, 9\ns_add_u32 s31, s31, s32")
    for j in range(4):
        e.vmem(f"buffer_load_dwordx2 {vr(M+2*j,2)}, v{RO+1}, s[12:15], s31 offen", "m")
        if j < 3: e(f"s_add_u32 s31, s31, {16<<17}")
    map_part2(e, vN, vF, vRk, T0, vL16, sWave, sOwnN, sOwnR, sU, K2_WTOT)
    e(f"""
    s_cmp_gt_u32 s{sU}, {4*CB2*64}
    s_cbranch_scc1 k2_overflow
    s_add_u32 s{sCB}, s{sU}, 255
    s_lshr_b32 s{sCB}, s{sCB}, 8
    v_and_b32 v{vE}, 0xffff, v{vE}
    v_mul_u32_u24 v{T0}, {S1//4}, v0
    v_mul_u32_u24 v{T0+1}, 3, v{vF}
    v_add_u32 v{vE}, v{vE}, v{T0}
    v_sub_u32 v{vE}, v{vE}, v{T0+1}
    v_lshlrev_b32 v{vE}, 2, v{vE}
    v_lshlrev_b32 v{T0}, 2, v{vRk}
    v_cmpx_lt_u32 vcc, 0, v{vN}
    ds_write_b32 v{T0}, v{vE} offset:{K2_DEL}
    """)
    map_part3(e, "k2", vN, vF, vRk, T0, K2_MAP)
    e(f"""
    v_mul_u32_u24 v{vQ}, 12, v0
    s_lshl_b32 s31, s{sWave}, 4
    v_mov_b32 v{vEnt}, s31
    s_waitcnt lgkmcnt(0)
    s_barrier
    """)
    stamp(e, "map")
    def addr_a(j):
        mk = MK[j & 1]
        for r in range(7):
            e(f"ds_read_b128 {vr(V+4*r,4)}, v{vEnt} offset:{K2_MAP + r*256}")
        e(f"""
        s_mul_i32 s31, s{sCB}, {64*j}
        s_sub_i32 s31, s{sU}, s31
        s_lshl_b32 s32, s{sCB}, 6
        s_min_i32 s31, s31, s32
        """)
        for r in range(7):
            e(f"v_cmp_gt_i32_e64 {sr(mk+2*r,2)}, s31, v0")
            e(f"v_mov_b32 v{RAW+4*r+3}, 0x80000000")
            if r < 6: e("s_sub_i32 s31, s31, 1024")
    def addr_b(j):
        for r in range(7):
            e(f"""
            v_mbcnt_lo_u32_b32 v{V+4*r+2}, v{V+4*r}, v{V+4*r+2}
            v_mbcnt_hi_u32_b32 v{V+4*r+2}, v{V+4*r+1}, v{V+4*r+2}
            v_lshlrev_b32 v{V+4*r+2}, 2, v{V+4*r+2}
            ds_read_b32 v{V+4*r+2}, v{V+4*r+2} offset:{K2_DEL}
            """)
    def addr_c(j):
        mk = MK[j & 1]
        for r in range(7):
            e(f"""
            s_mov_b64 exec, {sr(mk+2*r,2)}
            s_mov_b32 s31, {r*12288}
            v_add3_u32 v{RAW+4*r+3}, v{V+4*r+2}, v{vQ}, s31
            """)
        e(f"""
        s_mov_b64 exec, -1
        s_lshl_b32 s31, s{sCB}, 4
        s_mul_i32 s32, s{sCB}, 768
        v_add_u32 v{vEnt}, s31, v{vEnt}
        v_add_u32 v{vQ}, s32, v{vQ}
        """)
    def load(j, r):
        if j >= 4: return
        e.vmem(f"buffer_load_dwordx3 {vr(RAW+4*r,3)}, v{RAW+4*r+3}, s[8:11], 0 offen{RDPOL}", ("L", j, r))
    W = "s_waitcnt lgkmcnt(0)"
    addr_a(0); e(W); addr_b(0); e(W); addr_c(0)
    for r in range(3): load(0, r)
    stamp(e, "ld0iss")
    sel_consts(e, T0 + 2, T0 + 3)
    sel_wT(e, WD, 72, T0 + 2, T0 + 3, T0)
    e("s_nop 0")
    e.waitvm("m")
    MD = RO
    vMax = T0 + 4
    for j in range(4): e(f"{MFMA} {vr(MD+4*j,4)}, {vr(WD,2)}, {vr(M+2*j,2)}, 0")
    e(f"v_mov_b32 v{vMax}, 0\ns_nop 0")
    def md_row(j):
        for h in range(2):
            a = MD + 4*j + 2*h
            e(f"""
            v_cvt_pk_bf16_f32 v{a}, 0, v{a}
            v_cvt_pk_bf16_f32 v{a+1}, 0, v{a+1}
            v_and_b32 v{T0}, 0x7fffffff, v{a}
            v_and_b32 v{T0+1}, 0x7fffffff, v{a+1}
            v_max3_u32 v{vMax}, v{T0}, v{T0+1}, v{vMax}
            """)
    for j in range(3): md_row(j)
    duty(e, 0, sWave, "k2_md3", lambda: md_row(3))
    wave_scan(e, vMax, "v_max_u32")
    e(f"""
    s_lshl_b32 s31, s{sWave}, 4
    v_readlane_b32 s32, v{vMax}, 63
    v_mov_b32 v{T0}, s31
    v_and_b32 v{T0+2}, 0xf0, v{vL16}
    v_mov_b32 v{T0+1}, s32
    ds_write_b32 v{T0}, v{T0+1} offset:{K2_WTOT+8}
    s_waitcnt lgkmcnt(0)
    s_barrier
    ds_read_b32 v{vMax}, v{T0+2} offset:{K2_WTOT+8}
    s_waitcnt lgkmcnt(0)
    """)
    row_scan(e, [vMax], ["v_max_u32"])
    e(f"""
    v_lshrrev_b32 v{T0+2}, 1, v{vA}
    v_readlane_b32 s32, v{vMax}, 15
    s_nop 0
    s_lshr_b32 s32, s32, 23
    s_sub_u32 s33, 268, s32
    s_min_u32 s33, s33, 254
    s_cmp_eq_u32 s32, 255
    s_cselect_b32 s34, 0, s33
    s_lshl_b32 s32, s33, 23
    s_mov_b32 s33, s32
    """)
    def tab_row(j):
        for h in range(2):
            a = MD + 4*j + 2*h
            e(f"v_pk_mul_f32 {vr(a,2)}, {vr(a,2)}, s[32:33]\nv_cvt_pkrtz_f16_f32 v{T0+h}, v{a}, v{a+1}")
        e(f"ds_write_b64 v{T0+2}, {vr(T0,2)} offset:{K2_TAB + j*8192}")
    for j in range(3): tab_row(j)
    duty(e, 0, sWave, "k2_tab3", lambda: tab_row(3))
    e("s_waitcnt lgkmcnt(0)\ns_barrier")
    for r in range(3, 7): load(0, r)
    stamp(e, "tab")
    def stage_a(j, r, cnt):
        e.waitvm(("L", j, r))
        e(f"s_mov_b64 exec, {sr(MK[j&1]+2*r,2)}")
        for h in range(2):
            d = RAW + 4*r + 2*h; i = 2*r + h
            e(f"""
            v_lshrrev_b32 v{T0+h}, 17, v{d}
            v_lshrrev_b32 v{CA+i}, 4, v{d}
            v_and_b32 v{T0+h}, 0x7ff8, v{T0+h}
            v_and_b32 v{CA+i}, 0x3fc, v{CA+i}
            ds_read_b64 {vr(V+2*i,2)}, v{T0+h} offset:{K2_TAB}
            ds_add_rtn_u32 v{RK+i}, v{CA+i}, v{vEight} offset:{cnt}
            v_lshl_add_u32 v{T0+2+h}, v{d}, 2, s{sBias}
            v_bfi_b32 v{d}, 63, v{d}, v{T0+2+h}
            """)
    def stage_b(j, r):
        for h in range(2):
            d = RAW + 4*r + 2*h; i = 2*r + h; c = RAW + 4*r + 1
            sel = f"op_sel:[0,{h}] op_sel_hi:[1,{h}]"
            e(f"""
            v_pk_mul_f16 v{V+2*i}, v{V+2*i}, v{c} {sel}
            v_pk_mul_f16 v{V+2*i+1}, v{V+2*i+1}, v{c} {sel}
            v_lshrrev_b32 v{T0+h}, 3, v{d}
            v_add_u32 v{V+2*i}, 0x40004, v{V+2*i}
            v_add_u32 v{V+2*i+1}, 0x40004, v{V+2*i+1}
            v_bfi_b32 v{V+2*i}, s{sMsk}, v{d}, v{V+2*i}
            v_bfi_b32 v{V+2*i+1}, s{sMsk}, v{T0+h}, v{V+2*i+1}
            """)
    def ro_read(r):
        e(f"ds_read_b128 {vr(RO+4*(r%4),4)}, v{(vA, vA2, vA3, vA4)[r//2]} offset:{K2_BUF + (r % 2) * 16384}")
    def store(j, r):
        e(f"s_add_u32 s31, s29, {r*16384}")
        e.vmem(f"buffer_store_dwordx4 {vr(RO+4*(r%4),4)}, v{vA}, s[20:23], s31 offen{STPOL}", ("S", j))
    NPRE = int(os.environ.get("NPRE", 3))
    for j in range(4):
        cnt = K2_CNT[j & 1]; cnt_o = K2_CNT[(j + 1) & 1]; mk = MK[j & 1]
        if j > 0:
            for r in range(4): ro_read(r)
        if j < 3: addr_a(j + 1)
        e(W)
        if j < 3: addr_b(j + 1)
        if j > 0: store(j - 1, 0); store(j - 1, 1)
        if j < 3: e(W); addr_c(j + 1)
        for r in (0, 1, 2): stage_a(j, r, cnt)
        e("s_mov_b64 exec, -1")
        if j > 0:
            store(j - 1, 2); store(j - 1, 3)
            for r in (4, 5, 6): ro_read(r)
        e(W)
        for r in (0, 1, 2): stage_b(j, r)
        for r in (3, 4, 5): stage_a(j, r, cnt)
        e("s_mov_b64 exec, -1")
        if j > 0:
            for r in (4, 5, 6): store(j - 1, r)
        e(W)
        for r in (3, 4, 5): stage_b(j, r)
        e.waitvm(("L", j, 6))
        e(f"s_cmp_eq_u64 {sr(mk+12,2)}, 0\ns_cbranch_scc1 k2_r6_{j}")
        stage_a(j, 6, cnt)
        e("s_mov_b64 exec, -1\ns_waitcnt lgkmcnt(0)")
        stage_b(j, 6)
        e(f"k2_r6_{j}:")
        for r in range(NPRE): load(j + 1, r)
        stamp(e, f"p1e_{j}")
        e("s_barrier")
        stamp(e, f"b1_{j}")
        c = T0; cp = T0 + 4; sc = T0 + 8; tt = T0 + 9; b = RO
        e(f"ds_read_b128 {vr(c,4)}, v{vL16} offset:{cnt}\ns_waitcnt lgkmcnt(0)")
        for i in range(4): e(f"v_and_b32 v{cp+i}, 8, v{c+i}")
        for i in range(4): e(f"v_add_u32 v{cp+i}, v{cp+i}, v{c+i}")
        e(f"v_add_u32 v{tt}, v{cp}, v{cp+1}\nv_add3_u32 v{tt}, v{tt}, v{cp+2}, v{cp+3}\nv_mov_b32 v{sc}, v{tt}")
        wave_scan(e, sc)
        e(f"""
        v_sub_u32 v{b}, v{sc}, v{tt}
        v_readlane_b32 s33, v{sc}, 63
        v_add_u32 v{b+1}, v{b}, v{cp}
        v_add_u32 v{b+2}, v{b+1}, v{cp+1}
        v_add_u32 v{b+3}, v{b+2}, v{cp+2}
        ds_write_b128 v{vL16}, {vr(b,4)} offset:{K2_BASE}
        s_add_u32 s29, s30, {j*S2}
        s_add_u32 s33, s33, 127
        s_and_b32 s33, s33, 0xffffff80
        s_add_u32 s22, s29, s33
        """)
        for r in range(7):
            e(f"s_mov_b64 exec, {sr(mk+2*r,2)}")
            for h in range(2): e(f"ds_read_b32 v{CA+2*r+h}, v{CA+2*r+h} offset:{K2_BASE}")
        e(f"s_mov_b64 exec, -1\ns_cmp_lt_u32 s{sWave}, 13\ns_cbranch_scc1 k2_dutyC_{j}")
        def dA():
            if j == 0: e("s_lshl_b32 s31, s34, 26")
            elif j == 1: e("s_lshr_b32 s31, s34, 6\ns_lshl_b32 s31, s31, 26")
            else: e("s_mov_b32 s31, 0")
            for i in range(4):
                e(f"v_lshrrev_b32 v{b+i}, 4, v{b+i}\nv_lshl_or_b32 v{b+i}, v{cp+i}, 9, v{b+i}\nv_or_b32 v{b+i}, s31, v{b+i}")
            e(f"ds_write_b128 v{vL16}, {vr(b,4)} offset:{K2_DIRB + j*1024}")
        duty(e, 15, sWave, f"k2_dutyA_{j}", dA)
        def dB():
            e(f"v_mov_b32 v{sc}, 0\nv_mov_b32 v{tt}, 0")
            for i in range(4):
                e(f"""
                v_add_u32 v{b+i}, v{b+i}, v{c+i}
                v_cmpx_ne_u32 vcc, v{cp+i}, v{c+i}
                ds_write_b64 v{b+i}, {vr(sc,2)} offset:{K2_BUF}
                s_mov_b64 exec, -1
                """)
        duty(e, 14, sWave, f"k2_dutyB_{j}", dB)
        def dC():
            if j < 3:
                for i in range(4): e(f"v_mov_b32 v{c+i}, 0")
                e(f"ds_write_b128 v{vL16}, {vr(c,4)} offset:{cnt_o}")
        duty(e, 13, sWave, f"k2_dutyC_{j}", dC)
        e(W)
        rest = list(range(NPRE, 7))
        for r in range(7):
            e(f"s_mov_b64 exec, {sr(mk+2*r,2)}")
            for h in range(2):
                i = 2*r + h
                e(f"v_add_u32 v{RK+i}, v{RK+i}, v{CA+i}\nds_write_b64 v{RK+i}, {vr(V+2*i,2)} offset:{K2_BUF}")
            if r >= 7 - len(rest) - 1 and rest and j < 3:
                e("s_mov_b64 exec, -1"); load(j + 1, rest.pop(0))
        e("s_mov_b64 exec, -1")
        for r in rest: load(j + 1, r)
        e("s_waitcnt lgkmcnt(0)\ns_barrier")
        stamp(e, f"b2_{j}")
    R = V
    for r in range(7):
        e(f"ds_read_b128 {vr(R+4*r,4)}, v{(vA, vA2, vA3, vA4)[r//2]} offset:{K2_BUF + (r % 2) * 16384}")
    for r in range(7):
        e(f"s_add_u32 s31, s29, {r*16384}\ns_waitcnt lgkmcnt({6-r})")
        e(f"buffer_store_dwordx4 {vr(R+4*r,4)}, v{vA}, s[20:23], s31 offen{STPOL}")
    e(f"""
    s_cmp_lt_u32 s{sWave}, 12
    s_cbranch_scc1 k2_fin
    v_lshrrev_b32 v{T0+4}, 2, v{vA}
    v_and_b32 v{T0+4}, 0x3fc, v{T0+4}
    """)
    for k in range(4): e(f"ds_read_b32 v{T0+k}, v{T0+4} offset:{K2_DIRB + k*1024}")
    e(f"""
    s_waitcnt lgkmcnt(0)
    s_branch k2_dirst
    k2_overflow:
    v_mov_b32 v{T0}, 0
    v_mov_b32 v{T0+1}, 0
    v_mov_b32 v{T0+2}, 0
    v_mov_b32 v{T0+3}, 0
    k2_dirst:
    v_and_b32 v{T0+5}, 0xff0, v{vA}
    s_lshl_b32 s31, s{sB}, 12
    buffer_store_dwordx4 {vr(T0,4)}, v{T0+5}, s[24:27], s31 offen{STPOL}
    k2_fin:
    """)
    stamp_out(e, 1)
    e("k2_done:\ns_endpgm")
    return e.text(), NV, 80

from gb2k3 import *

if __name__ == "__main__":
    which = sys.argv[1] if len(sys.argv) > 1 else "123"
    ks = []
    if "1" in which: ks.append(("k1_kernel", gen_k1(), NW1, 1024, K1_LDS))
    if "2" in which: ks.append(("k2_kernel", gen_k2(), 256, 1024, K2_LDS))
    if "3" in which: ks.append(("k3_kernel", gen_k3(sys.modules[__name__]), 256, 1024, K3_LDS))
    emit(ks)
```

```python
import os, sys
from common import *
STAMPS = os.environ.get("STAMPS", "0") == "1"
EXP = os.environ.get("EXP", "")
STAMP_OFF = 240 << 20
vS = 127

class Asm:
    def __init__(self):
        self.o = []
        self.stamps = []
        self.vm = []
    def __call__(self, s):
        for line in s.strip("\n").split("\n"):
            line = line.strip()
            if not line: continue
            if line.endswith(":"): self.o.append(line)
            else: self.o.append("    " + line)
    def raw(self, s): self.o.append(s.rstrip("\n"))
    def vmem(self, s, tag):
        self(s); self.vm.append(tag)
    def waitvm(self, tag, keep=False):
        c = [i for i, t in enumerate(self.vm) if t == tag]
        if not c: return
        idx = max(c)
        n = len(self.vm) - 1 - idx
        assert n <= 63
        self(f"s_waitcnt vmcnt({n})")
        self.vm = self.vm[idx + 1:]
    def text(self): return "\n".join(self.o) + "\n"

def stamp(e, name):
    if not STAMPS: return
    idx = len(e.stamps); e.stamps.append(name)
    e(f"s_memrealtime s[100:101]\ns_waitcnt lgkmcnt(0)\nv_writelane_b32 v{vS}, s100, {idx}")
    if name in ("start", "end"):
        e(f"s_memtime s[100:101]\ns_waitcnt lgkmcnt(0)\nv_writelane_b32 v{vS}, s100, {62 if name == 'start' else 63}")
def stamp_out(e, kidx):
    if not STAMPS: return
    e("s_waitcnt vmcnt(0)")
    stamp(e, "end")
    e(f"""
    s_load_dwordx2 s[96:97], s[0:1], 104
    s_mov_b32 s98, 0x10000000
    s_mov_b32 s99, 0x00020000
    s_lshl_b32 s100, s2, 12
    s_add_u32 s100, s100, {STAMP_OFF + kidx * (1 << 20)}
    v_lshlrev_b32 v126, 2, v0
    s_waitcnt lgkmcnt(0)
    buffer_store_dword v{vS}, v126, s[96:99], s100 offen
    """)
    sys.stderr.write(f"STAMPS{kidx} " + " ".join(e.stamps) + "\n")

def vr(a, n): return f"v[{a}:{a+n-1}]"
def sr(a, n): return f"s[{a}:{a+n-1}]"

def wave_scan(e, v, op="v_add_u32"):
    for sh in (1, 2, 4, 8):
        e(f"s_nop 1\n{op}_dpp v{v}, v{v}, v{v} row_shr:{sh} row_mask:0xf bank_mask:0xf")
    e(f"s_nop 1\n{op}_dpp v{v}, v{v}, v{v} row_bcast:15 row_mask:0xa bank_mask:0xf")
    e(f"s_nop 1\n{op}_dpp v{v}, v{v}, v{v} row_bcast:31 row_mask:0xc bank_mask:0xf")

def row_scan(e, vs, ops=None):
    ops = ops or ["v_add_u32"] * len(vs)
    for sh in (1, 2, 4, 8):
        if len(vs) < 3: e(f"s_nop {2-len(vs)}")
        for v, op in zip(vs, ops): e(f"{op}_dpp v{v}, v{v}, v{v} row_shr:{sh} row_mask:0xf bank_mask:0xf")

def add64(e, d, b, off):
    e(f"s_add_u32 s{d}, s{b}, {off}\ns_addc_u32 s{d+1}, s{b+1}, 0")

def unpack_s(e, dst, src, n):
    for i in range(0, n, 2):
        e(f"s_lshl_b32 s{dst+i}, s{src+i//2}, 16\ns_and_b32 s{dst+i+1}, s{src+i//2}, 0xffff0000")

def emit(ks):
    o = [HEADER]
    for name, (txt, nv, ns), grid, blk, lds in ks:
        o.append(f"; @launch kernel={name} grid=({grid},1,1) block=({blk},1,1) lds={lds}\n")
    o.append('.amdgcn_target "amdgcn-amd-amdhsa--gfx950"\n.text\n')
    for name, (txt, nv, ns), grid, blk, lds in ks: o.append(txt)
    o.append('.section .rodata,"a"\n')
    for name, (txt, nv, ns), grid, blk, lds in ks:
        o.append(".p2align 6\n" + kd(name, 128 if STAMPS else nv, 102 if STAMPS else ns))
    print("".join(o))

CPF = os.environ.get("CPF", "")
def code_prefetch(e, name, vt, nbytes_label_end):
    if not CPF: return
    e(f"""
    s_getpc_b64 s[92:93]
    {name}_pc:
    s_mov_b32 s94, {nbytes_label_end} - {name}_pc
    s_mov_b32 s95, 0x00020000
    v_lshlrev_b32 v{vt}, 7, v0
    """)
    e.vmem(f"buffer_load_dword v{vt}, v{vt}, s[92:95], 0 offen", "cpf")
```

```python
from asmlib import *
G3 = int(os.environ.get("G3", 4))
CAP3 = 512
K3_WTOT = 0; K3_FLAG = 256; K3_CLAIM = 260; K3_DEL = 272; K3_MAP = K3_DEL + 8192 + 16
K3_NENT = CAP3 + 16 * (3 * G3)
K3_ACC = K3_MAP + K3_NENT * 16
AST = 25600
K3_F64 = 512
K3_LDS = max(K3_ACC + 2 * AST, K3_F64 + 4 * 25600)
FB = 7
CHK = 8
MAGIC = 0x20400000
PRIO = os.environ.get('PRIO', '')

def gen_k3(g):
    MFMA = g.MFMA; duty = g.duty
    e = Asm()
    e.raw(kstart("k3_kernel"))
    vA, vL16, vMsk, vBase, vQ2, vEnt, vQ, vRow = 1, 2, 3, 4, 5, 6, 7, 8
    VQ = (vQ, vQ2)
    sRem1, sRem2 = 37, 34
    T0 = 10
    X = 26
    EN = X + 4 * G3
    P = (EN + 4 * G3, EN + 6 * G3)
    DI = EN + 8 * G3
    M = DI + 4
    SR = M + 8
    WU = SR + 32
    NV = WU + 2
    assert NV <= 126, NV
    WS_, WR_ = T0 + 8, T0 + 12
    sWave, sB, sU, sOwnN, sOwnR, sEmin, sRem, sW0, sW1, sRow, sMagic = 3, 35, 36, 38, 39, 40, 41, 43, 44, 45, 42
    sCen, sT = 48, 52
    e("s_cmpk_ge_u32 s2, 256\ns_cbranch_scc1 k3_done")
    stamp(e, "start")
    code_prefetch(e, "k3", 9, "k3_fallback")
    e(f"""
    s_load_dwordx2 s[6:7], s[0:1], 104
    s_load_dwordx2 s[12:13], s[0:1], 0
    s_load_dwordx2 s[20:21], s[0:1], 24
    s_load_dwordx2 s[24:25], s[0:1], 88
    s_load_dwordx2 s[4:5], s[0:1], 40
    s_load_dwordx4 s[52:55], s[0:1], 56
    s_load_dwordx2 s[56:57], s[0:1], 80
    v_readfirstlane_b32 s3, v0
    s_and_b32 s{sB}, s2, 7
    s_lshl_b32 s{sB}, s{sB}, 5
    s_lshr_b32 s31, s2, 3
    s_add_u32 s{sB}, s{sB}, s31
    {f"s_mov_b32 s{sB}, s2" if "noxcd" in EXP else ""}
    s_lshr_b32 s3, s3, 6
    v_lshlrev_b32 v{vA}, 4, v0
    v_and_b32 v{T0+1}, 3, v0
    v_lshrrev_b32 v{T0}, 2, v0
    v_lshlrev_b32 v{T0}, 12, v{T0}
    v_lshl_or_b32 v{T0}, v{T0+1}, 2, v{T0}
    v_and_b32 v{vL16}, 0x3f0, v{vA}
    s_mov_b32 s18, {1<<20}
    s_mov_b32 s19, 0x00020000
    s_lshl_b32 s31, s{sB}, 4
    s_waitcnt lgkmcnt(0)
    """)
    add64(e, 16, 6, g.DIR2)
    vE, vSc = T0 + 4, EN
    e.vmem(f"buffer_load_dword v{vE}, v{T0}, s[16:19], s31 offen", "dir")
    add64(e, 8, 6, g.REC2 - 4096)
    e(f"""
    s_load_dwordx4 {sr(sCen,4)}, s[4:5], 0
    s_load_dwordx16 s[60:75], s[52:53], 0
    s_load_dwordx16 s[76:91], s[54:55], 0
    s_load_dwordx8 s[92:99], s[56:57], 0
    v_mov_b32 v{vMsk}, 0x00070007
    v_mov_b32 v{vBase}, {K3_ACC}
    v_lshrrev_b32 v{vRow}, 1, v{vL16}
    v_lshrrev_b32 v{EN+3}, 3, v{vL16}
    s_mov_b32 s{sW0}, {8 | (512 << 16)}
    s_mov_b32 s{sW1}, {64 | (4096 << 16)}
    s_mov_b32 s{sMagic}, {MAGIC}
    s_mov_b32 s14, {E*8}
    s_mov_b32 s15, 0x00020000
    s_mov_b32 s22, {E*2}
    s_mov_b32 s23, 0x00020000
    s_mov_b32 s26, {E*8}
    s_mov_b32 s27, 0x00020000
    s_mov_b32 s10, {g.REC2_SZ + 4096}
    s_mov_b32 s11, 0x00020000
    s_lshl_b32 s{sRow}, s{sWave}, 17
    s_lshl_b32 s32, s{sB}, 9
    s_add_u32 s{sRow}, s{sRow}, s32
    """)
    for i in range(4): e(f"v_mov_b32 v{X+i}, 0")
    e(f"v_add_u32 v{T0}, 0x8000, v{vA}")
    zb = 2 * AST
    for r in range(3):
        e(f"ds_write_b128 v{vA if r < 2 else T0}, {vr(X,4)} offset:{K3_ACC + (r if r < 2 else r-2)*16384}")
    e(f"""
    ds_write_b32 v{X}, v{X} offset:{K3_FLAG}
    v_mov_b32 v{X+7}, {32*64}
    ds_write_b32 v{X}, v{X+7} offset:{K3_CLAIM}
    v_mov_b32 v{X+6}, 1024
    v_mov_b32 v{X+4}, 0
    v_mov_b32 v{X+5}, 0
    v_cmpx_gt_u32 vcc, {K3_NENT}, v0
    ds_write_b128 v{vA}, {vr(X+4,4)} offset:{K3_MAP}
    v_bfrev_b32 v{X+8}, 1
    v_bfrev_b32 v{X+10}, 1
    v_cmpx_gt_u32 vcc, 513, v0
    ds_write_b128 v{vA}, {vr(X+8,4)} offset:{K3_DEL}
    v_cmpx_gt_u32 vcc, {(zb - 3*16384)//16}, v0
    ds_write_b128 v{T0}, {vr(X,4)} offset:{K3_ACC + 16384}
    s_mov_b64 exec, -1
    """)
    assert 1024 >= K3_NENT >= 513 >= (zb - 3*16384)//16
    vN, vF, vRk = T0 + 5, T0 + 6, T0 + 7
    e.waitvm("dir")
    stamp(e, "dir")
    e(f"""
    v_lshrrev_b32 v{T0}, 26, v{vE}
    v_bfe_u32 v{vN}, v{vE}, 13, 13
    s_nop 0
    v_mov_b32_dpp v{T0+1}, v{T0} quad_perm:[1,1,1,1] row_mask:0xf bank_mask:0xf
    v_mov_b32_dpp v{T0+2}, v{T0} quad_perm:[0,0,0,0] row_mask:0xf bank_mask:0xf
    v_lshl_or_b32 v{vSc}, v{T0+1}, 6, v{T0+2}
    v_mov_b32 v{EN+1}, v{vSc}
    """)
    wave_scan(e, EN + 1, "v_min_u32")
    e(f"s_nop 0\nv_readlane_b32 s{sEmin}, v{EN+1}, 63")
    g.map_part1(e, vN, vF, vRk, T0, sWave, sOwnN, sOwnR, K3_WTOT, extra=sEmin)
    e("s_waitcnt lgkmcnt(0)\ns_barrier")
    e(f"s_lshr_b32 s31, s{sRow}, 2")
    for j in range(4):
        e.vmem(f"buffer_load_ushort v{DI+j}, v{EN+3}, s[20:23], s31 offen", "dist")
        if j < 3: e(f"s_add_u32 s31, s31, {16<<15}")
    g.map_part2(e, vN, vF, vRk, T0, vL16, sWave, sOwnN, sOwnR, sU, K3_WTOT, sMin=sEmin)
    e(f"""
    s_cmp_gt_u32 s{sU}, {CAP3*64}
    s_cselect_b32 s{sEmin}, 0, s{sEmin}
    s_cmp_eq_u32 s{sEmin}, 0
    s_cselect_b32 s{sU}, 0, s{sU}
    s_cbranch_scc1 k3_nomap
    v_and_b32 v{vE}, 0x1fff, v{vE}
    v_mul_u32_u24 v{T0}, {g.S2//16}, v0
    v_add_u32 v{vE}, v{vE}, v{T0}
    v_sub_u32 v{vE}, v{vE}, v{vF}
    v_add_u32 v{vE}, 256, v{vE}
    v_lshlrev_b32 v{T0+2}, 4, v{vE}
    s_add_u32 s31, s{sEmin}, {127 + FB - 86}
    v_sub_u32 v{T0+3}, s31, v{vSc}
    v_max_i32 v{T0+3}, 0, v{T0+3}
    v_lshlrev_b32 v{T0+3}, 23, v{T0+3}
    v_lshlrev_b32 v{T0}, 3, v{vRk}
    v_cmpx_lt_u32 vcc, 0, v{vN}
    ds_write_b64 v{T0}, {vr(T0+2,2)} offset:{K3_DEL}
    """)
    g.map_part3(e, "k3", vN, vF, vRk, T0, K3_MAP)
    e(f"""
    k3_nomap:
    s_lshl_b32 s31, s{sWave}, 6
    v_mov_b32 v{vEnt}, s31
    s_lshl_b32 s31, s{sWave}, 8
    s_sub_i32 s{sRem}, s{sU}, s31
    s_sub_i32 s{sRem1}, s{sRem}, {16*256}
    s_mov_b32 m0, 0
    s_waitcnt lgkmcnt(0)
    s_barrier
    """)
    stamp(e, "map")
    assert G3 == 4
    W = "s_waitcnt lgkmcnt(0)"
    def ent_reads(s):
        for i in range(G3): e(f"ds_read_b128 {vr(EN+4*i,4)}, v{vEnt} offset:{K3_MAP + i*16}")
        e(f"v_lshl_add_u32 v{VQ[s]}, v{vEnt}, 6, v{vL16}")
    def ranks():
        for i in range(G3):
            e(f"""
            v_mbcnt_lo_u32_b32 v{EN+4*i+2}, v{EN+4*i}, v{EN+4*i+2}
            v_mbcnt_hi_u32_b32 v{EN+4*i+2}, v{EN+4*i+1}, v{EN+4*i+2}
            v_lshlrev_b32 v{EN+4*i+2}, 3, v{EN+4*i+2}
            """)
    def del_reads(s):
        for i in range(G3): e(f"ds_read_b64 {vr(P[s]+2*i,2)}, v{EN+4*i+2} offset:{K3_DEL}")
    def claim(): e(f"ds_append v{vEnt} offset:{K3_CLAIM}")
    def load(s, i):
        return (f"v_add_u32 v{P[s]+2*i}, v{P[s]+2*i}, v{VQ[s]}\n"
                f"buffer_load_dwordx4 {vr(X+4*i,4)}, v{P[s]+2*i}, s[8:11], 0 offen offset:{i*1024}{g.RDPOL}")
    if "s" in PRIO: e("s_setprio 3")
    ent_reads(0); e(f"v_add_u32 v{vEnt}, {16*64}, v{vEnt}"); e(W); ranks(); del_reads(0); ent_reads(1); e(W)
    for i in range(G3): e.vmem(load(0, i), "x")
    if "s" in PRIO: e("s_setprio 0")
    stamp(e, "ld0iss")
    ranks(); del_reads(1)
    e(f"s_mov_b32 s31, s{sRow}")
    for j in range(4):
        e.vmem(f"buffer_load_dwordx2 {vr(M+2*j,2)}, v{vRow}, s[12:15], s31 offen", "m")
        if j < 3: e(f"s_add_u32 s31, s31, {16<<17}")
    unpack_s(e, sT, sCen, 8)
    g.sel_consts(e, T0 + 2, T0 + 3)
    g.sel_wT(e, WR_, 60, T0 + 2, T0 + 3, T0); g.sel_wT(e, WR_ + 2, 68, T0 + 2, T0 + 3, T0)
    g.sel_wT(e, WS_, 76, T0 + 2, T0 + 3, T0); g.sel_wT(e, WS_ + 2, 84, T0 + 2, T0 + 3, T0)
    g.sel_wT(e, WU, 92, T0 + 2, T0 + 3, T0)
    e.waitvm("dist")
    stamp(e, "dist")
    def rnd(a): e(f"v_cvt_pk_bf16_f32 v{a}, 0, v{a}")
    def rbf_row(j):
        t = T0
        e(f"v_lshlrev_b32 v{DI+j}, 16, v{DI+j}")
        for r in range(8): e(f"v_subrev_f32 v{t+r}, s{sT+r}, v{DI+j}")
        for r in range(8): rnd(t + r)
        for r in range(8): e(f"v_mul_f32 v{t+r}, v{t+r}, v{t+r}")
        for r in range(8): rnd(t + r)
        for r in range(8): e(f"v_mul_f32 v{t+r}, 0xc1200000, v{t+r}")
        for r in range(8): rnd(t + r)
        for r in range(8): e(f"v_mul_f32 v{t+r}, 0x3fb8aa3b, v{t+r}")
        for r in range(8): e(f"v_exp_f32 v{t+r}, v{t+r}")
        for p in range(4): e(f"v_cvt_pk_bf16_f32 v{t+p}, v{t+2*p}, v{t+2*p+1}")
        S = SR + 8*j
        e(f"""
        s_nop 0
        {MFMA} {vr(S,4)}, {vr(WS_,2)}, {vr(t,2)}, 0
        {MFMA} {vr(S+4,4)}, {vr(WR_,2)}, {vr(t,2)}, 0
        s_nop 0
        {MFMA} {vr(S,4)}, {vr(WS_+2,2)}, {vr(t+2,2)}, {vr(S,4)}
        {MFMA} {vr(S+4,4)}, {vr(WR_+2,2)}, {vr(t+2,2)}, {vr(S+4,4)}
        """)
    for j in range(3): rbf_row(j)
    duty(e, 0, sWave, "k3_rbf3", lambda: rbf_row(3))
    stamp(e, "rbf")
    if "nold" in EXP: e("s_waitcnt vmcnt(0)")
    claim()
    e("k3_loop:")
    for s in range(2):
        for i in range(G3):
            lab = f"{s}_{i}"
            e(f"""
            s_cmp_lt_i32 s{sRem}, 64
            s_cbranch_scc1 k3_part{lab}
            k3_back{lab}:
            """)
            if s == 0:
                pass
            e(f"s_waitcnt vmcnt({G3-1})")
            for h in range(2):
                d = X + 4*i + 2*h; a = T0 + 8 + h; t = T0 + 4*h; x = T0 + 10 + 2*h; f = P[s] + 2*i + 1
                e(f"""
                v_and_b32 v{x}, v{vMsk}, v{d}
                v_and_b32 v{x+1}, v{vMsk}, v{d+1}
                v_dot2_u32_u16 v{a}, v{x}, s{sW0}, v{vBase}
                v_dot2_u32_u16 v{a}, v{x+1}, s{sW1}, v{a}
                v_xor_b32 v{x}, v{x}, v{d}
                v_xor_b32 v{x+1}, v{x+1}, v{d+1}
                v_fma_mix_f32 v{t+2}, v{x+1}, v{f}, s{sMagic} op_sel:[0,0,0] op_sel_hi:[1,0,0]
                v_fma_mix_f32 v{t+3}, v{x+1}, v{f}, s{sMagic} op_sel:[1,0,0] op_sel_hi:[1,0,0]
                v_fma_mix_f32 v{t}, v{x}, v{f}, s{sMagic} op_sel:[0,0,0] op_sel_hi:[1,0,0]
                v_fma_mix_f32 v{t+1}, v{x}, v{f}, s{sMagic} op_sel:[1,0,0] op_sel_hi:[1,0,0]
                v_lshl_or_b32 v{t+2}, v{t+3}, 29, v{t+2}
                v_lshrrev_b32 v{t+3}, 3, v{t+3}
                """)
            if i == 0: e(W)
            if "nold" not in EXP: e(load(1 - s, i))
            if i == 0:
                ent_reads(s)
                e(f"""
                v_readfirstlane_b32 s31, v{vEnt}
                s_nop 0
                s_lshl_b32 s31, s31, 2
                s_sub_i32 s{sRem2}, s{sU}, s31
                """)
                if "f" in PRIO:
                    e(f"""
                    s_sub_i32 s31, s{sRem1}, s{sRem2}
                    s_setprio 0
                    s_cmp_le_i32 s31, {16*256}
                    s_cbranch_scc1 k3_pr{s}
                    s_setprio 2
                    k3_pr{s}:
                    """)
            if i == G3 - 1:
                e(W); ranks(); del_reads(s); claim()
            for h in range(2):
                if "noat" in EXP: continue
                for q in range(2): e(f"ds_add_u64 v{T0+8+h}, {vr(T0+4*h+2*q,2)} offset:{q*AST}")
            if i < G3 - 1: e(f"s_sub_i32 s{sRem}, s{sRem}, 64")
            else: e(f"s_mov_b32 s{sRem}, s{sRem1}\ns_mov_b32 s{sRem1}, s{sRem2}")
    e("s_branch k3_loop")
    for s in range(2):
        for i in range(G3):
            lab = f"{s}_{i}"
            e(f"""
            k3_part{lab}:
            s_cmp_lt_i32 s{sRem}, 1
            s_cbranch_scc1 k3_loopdone
            s_bfm_b64 exec, s{sRem}, 0
            s_branch k3_back{lab}
            """)
    e(f"""
    k3_loopdone:
    s_mov_b64 exec, -1
    s_waitcnt vmcnt(0) lgkmcnt(0)
    """)
    stamp(e, "loopend")
    e("s_barrier")
    stamp(e, "bar")
    e(f"s_cmp_eq_u32 s{sEmin}, 0\ns_cbranch_scc1 k3_fallback")
    e.vm = []
    def finish_rows(rows, Aof):
        U = {j: T0 + 4*n for n, j in enumerate(rows)}
        for j in rows:
            A = Aof(j); S = SR + 8*j
            for q in range(4): e(f"v_mul_f32 v{A+q}, v{A+q}, v{S+q}")
            e(f"v_cvt_pk_bf16_f32 v{A}, v{A}, v{A+1}\nv_cvt_pk_bf16_f32 v{A+1}, v{A+2}, v{A+3}")
        e("s_nop 1")
        for j in rows: e(f"{MFMA} {vr(U[j],4)}, {vr(WU,2)}, {vr(Aof(j),2)}, 0")
        for j in rows:
            A = Aof(j); R = SR + 8*j + 4
            e(f"""
            v_lshlrev_b32 v{A}, 16, v{M+2*j}
            v_and_b32 v{A+1}, 0xffff0000, v{M+2*j}
            v_lshlrev_b32 v{A+2}, 16, v{M+2*j+1}
            v_and_b32 v{A+3}, 0xffff0000, v{M+2*j+1}
            """)
            for q in range(4): rnd(R + q)
        for j in rows:
            A = Aof(j); R = SR + 8*j + 4; u = U[j]
            for q in range(4): rnd(u + q)
            for q in range(4): e(f"v_mul_f32 v{u+q}, v{u+q}, v{R+q}")
            for q in range(4): rnd(u + q)
            for q in range(4): e(f"v_add_f32 v{A+q}, v{A+q}, v{u+q}")
            e(f"""
            v_cvt_pk_bf16_f32 v{A}, v{A}, v{A+1}
            v_cvt_pk_bf16_f32 v{A+1}, v{A+2}, v{A+3}
            s_add_u32 s31, s{sRow}, {j*(16<<17)}
            buffer_store_dwordx2 {vr(A,2)}, v{vRow}, s[24:27], s31 offen
            """)
    vAd = vEnt; vCnt = vQ
    e(f"""
    v_lshl_add_u32 v{vAd}, v0, 3, v{vBase}
    s_sub_i32 s30, {127 - FB}, s{sEmin}
    s_mov_b64 s[46:47], 0
    v_mov_b32 v{vCnt}, 0
    v_mov_b32 v{vMsk}, 0x1fffffff
    """)
    Afast = lambda j: X + 4*j
    def read_row(j):
        for q in range(2): e(f"ds_read_b64 {vr(X+4*j+2*q,2)}, v{vAd} offset:{q*AST + j*8192 + 512}")
    def fast_row(j):
        A = X + 4*j; n = T0; t = T0 + 1
        e(f"""
        v_lshrrev_b32 v{n}, 26, v{A+3}
        v_alignbit_b32 v{A+3}, v{A+3}, v{A+2}, 29
        v_lshrrev_b32 v{t}, 3, v{n}
        v_add_u32 v{vCnt}, v{vCnt}, v{n}
        v_sub_u32 v{A+1}, v{A+1}, v{t}
        v_sub_u32 v{A+3}, v{A+3}, v{n}
        v_lshlrev_b32 v{t}, 22, v{n}
        """)
        for q in range(4): e(f"v_and_b32 v{A+q}, v{vMsk}, v{A+q}")
        for q in range(4): e(f"v_sub_u32 v{A+q}, v{A+q}, v{t}")
        for q in range(4): e(f"v_cvt_f32_i32 v{A+q}, v{A+q}")
        e(f"""
        v_cvt_f32_u32 v{n}, v{n}
        v_max3_f32 v{t}, |v{A}|, |v{A+1}|, |v{A+2}|
        v_max_f32 v{t}, |v{A+3}|, v{t}
        v_mul_f32 v{n}, {hex((127 + CHK) << 23)}, v{n}
        v_cmp_lt_f32 vcc, v{t}, v{n}
        s_or_b64 s[46:47], s[46:47], vcc
        """)
        for q in range(4): e(f"v_ldexp_f32 v{A+q}, v{A+q}, s30")
    for j in range(3): read_row(j)
    def dummy():
        e(f"""
        v_add_u32 v{T0}, v{vBase}, v{vRow}
        ds_read_b32 v{vCnt}, v{T0} offset:{AST + 4}
        s_waitcnt lgkmcnt(0)
        v_lshrrev_b32 v{vCnt}, 26, v{vCnt}
        """)
    duty(e, 1, sWave, "k3_dummy", dummy)
    for j in range(3):
        e(f"s_waitcnt lgkmcnt({2*(2-j)})"); fast_row(j)
    finish_rows([0, 1, 2], Afast)
    def last():
        read_row(3); e(W); fast_row(3); finish_rows([3], Afast)
    duty(e, 0, sWave, "k3_epi3", last)
    wave_scan(e, vCnt)
    e(f"""
    s_cmp_eq_u64 s[46:47], 0
    s_cselect_b32 s31, 0, 0x1000000
    v_mov_b32 v{T0}, 0
    v_add_u32 v{vCnt}, s31, v{vCnt}
    s_bfm_b64 exec, 1, 63
    ds_add_u32 v{T0}, v{vCnt} offset:{K3_FLAG}
    s_mov_b64 exec, -1
    """)
    stamp(e, "epi")
    stamp_out(e, 2)
    e(f"""
    s_waitcnt lgkmcnt(0)
    s_barrier
    ds_read_b32 v{T0}, v{T0} offset:{K3_FLAG}
    s_lshl_b32 s32, s{sU}, 1
    s_waitcnt lgkmcnt(0)
    v_readfirstlane_b32 s31, v{T0}
    s_nop 0
    s_cmp_eq_u32 s31, s32
    s_cbranch_scc1 k3_done
    """)
    if "noat" in EXP or "nold" in EXP: e("s_branch k3_done")
    sWd = 72
    e(f"""
    k3_fallback:
    s_load_dwordx2 s[8:9], s[0:1], 8
    s_load_dwordx2 s[16:17], s[0:1], 16
    s_load_dwordx2 s[20:21], s[0:1], 32
    s_load_dwordx2 s[4:5], s[0:1], 48
    s_load_dwordx2 s[6:7], s[0:1], 72
    s_waitcnt vmcnt(0) lgkmcnt(0)
    s_load_dword s33, s[4:5], 0
    s_load_dwordx8 s[52:59], s[6:7], 0
    s_mov_b32 s10, {T*4}
    s_mov_b32 s11, 0x00020000
    s_mov_b32 s18, {T*4}
    s_mov_b32 s19, 0x00020000
    s_mov_b32 s22, {T*2}
    s_mov_b32 s23, 0x00020000
    """)
    for i in range(4): e(f"v_mov_b32 v{X+i}, 0")
    e(f"v_add_u32 v{T0}, 0xc000, v{vA}")
    for r in range(3): e(f"ds_write_b128 v{vA}, {vr(X,4)} offset:{K3_F64 + r*16384}")
    for r in range(3): e(f"ds_write_b128 v{T0}, {vr(X,4)} offset:{K3_F64 + r*16384}")
    e(f"""
    v_cmpx_gt_u32 vcc, 256, v0
    ds_write_b128 v{T0}, {vr(X,4)} offset:{K3_F64 + 3*16384}
    s_mov_b64 exec, -1
    s_waitcnt lgkmcnt(0)
    s_barrier
    s_lshl_b32 s33, s33, 16
    """)
    unpack_s(e, sWd, 52, 16)
    e(f"""
    s_mov_b32 s30, 0
    v_lshrrev_b32 v{vQ}, 1, v{vA}
    k3_fbloop:
    buffer_load_dwordx4 {vr(X,4)}, v{vA}, s[16:19], s30 offen
    s_lshr_b32 s29, s30, 1
    s_waitcnt vmcnt(0)
    """)
    for q in range(4):
        x = T0; y = T0 + 4; z = T0 + 8
        e(f"""
        v_bfe_u32 v{x}, v{X+q}, 6, 8
        v_cmpx_eq_u32 vcc, s{sB}, v{x}
        s_cbranch_execz k3_fbskip{q}
        buffer_load_dword v{x}, v{vA}, s[8:11], s30 offen offset:{4*q}
        buffer_load_ushort v{EN}, v{vQ}, s[20:23], s29 offen offset:{2*q}
        s_waitcnt vmcnt(1)
        v_lshlrev_b32 v{x}, 3, v{x}
        buffer_load_dwordx2 {vr(y,2)}, v{x}, s[12:15], 0 offen
        s_waitcnt vmcnt(1)
        v_lshlrev_b32 v{EN}, 16, v{EN}
        v_mul_f32 v{EN}, s33, v{EN}
        v_cvt_pk_bf16_f32 v{EN}, 0, v{EN}
        v_mul_f32 v{EN}, 0.15915494, v{EN}
        v_fract_f32 v{EN}, v{EN}
        v_cos_f32 v{EN}, v{EN}
        v_lshrrev_b32 v{EN+1}, 8, v{X+q}
        v_cvt_pk_bf16_f32 v{EN}, 0, v{EN}
        v_bfi_b32 v{EN+1}, 63, v{X+q}, v{EN+1}
        v_lshlrev_b32 v{EN+1}, 3, v{EN+1}
        v_add_u32 v{EN+2}, {2*25600}, v{EN+1}
        s_waitcnt vmcnt(0)
        v_lshlrev_b32 v{x}, 16, v{y}
        v_and_b32 v{x+1}, 0xffff0000, v{y}
        v_lshlrev_b32 v{x+2}, 16, v{y+1}
        v_and_b32 v{x+3}, 0xffff0000, v{y+1}
        """)
        for h in range(2):
            d = vr(y + 2*h, 2)
            e(f"v_pk_mul_f32 {d}, {vr(x,2)}, {sr(sWd+2*h,2)} op_sel:[0,0] op_sel_hi:[0,1]")
            e(f"v_pk_fma_f32 {d}, {vr(x,2)}, {sr(sWd+4+2*h,2)}, {d} op_sel:[1,0,0] op_sel_hi:[1,1,1]")
            e(f"v_pk_fma_f32 {d}, {vr(x+2,2)}, {sr(sWd+8+2*h,2)}, {d} op_sel:[0,0,0] op_sel_hi:[0,1,1]")
            e(f"v_pk_fma_f32 {d}, {vr(x+2,2)}, {sr(sWd+12+2*h,2)}, {d} op_sel:[1,0,0] op_sel_hi:[1,1,1]")
        for c in range(4): rnd(y + c)
        for c in range(4):
            e(f"v_mul_f32 v{y+c}, v{EN}, v{y+c}\nv_cvt_f64_f32 {vr(z+2*c,2)}, v{y+c}")
        for c in range(4):
            e(f"ds_add_f64 v{EN+1+c//2}, {vr(z+2*c,2)} offset:{K3_F64 + (c%2)*25600}")
        e(f"k3_fbskip{q}:\ns_mov_b64 exec, -1")
    e(f"""
    s_add_u32 s30, s30, 16384
    s_cmp_lt_u32 s30, {T*4}
    s_cbranch_scc1 k3_fbloop
    s_waitcnt lgkmcnt(0)
    s_barrier
    v_add_u32 v{vEnt}, {2*25600}, v{vQ}
    """)
    def slow_row(j):
        for c in range(4):
            e(f"ds_read_b64 {vr(EN+2*c,2)}, v{vQ if c < 2 else vEnt} offset:{K3_F64 + (c%2)*25600 + j*8192}")
        e(W)
        for c in range(4): e(f"v_cvt_f32_f64 v{X+c}, {vr(EN+2*c,2)}")
        finish_rows([j], lambda j: X)
        e("s_nop 1")
    for j in range(3): slow_row(j)
    e(f"s_cmp_lg_u32 s{sWave}, 0\ns_cbranch_scc1 k3_done")
    slow_row(3)
    e("k3_done:\ns_endpgm")
    return e.text(), NV, 100
```

```python
from asmlib import *

NW1   = 250
TPW   = 4
TILE  = 12800
S1    = TILE * 6 + 256 * 6
NT1   = NW1 * TPW
REC1  = 0
REC1_SZ = NT1 * S1
DIR1  = (REC1_SZ + 0xFFFFF) & ~0xFFFFF
DIR2  = DIR1 + (1 << 20)
CB2   = 104
S2    = (CB2 * 128 + 256) * 8
REC2  = DIR2 + (1 << 20)
REC2_SZ = 1024 * S2
assert REC2 + REC2_SZ <= STAMP_OFF
LDPOL = os.environ.get("LDPOL", " nt")
STPOL = os.environ.get("STPOL", " sc1")
RDPOL = os.environ.get("RDPOL", "")

def duty(e, wave, sWave, label, body):
    e(f"s_cmp_lg_u32 s{sWave}, {wave}\ns_cbranch_scc1 {label}")
    body()
    e(f"{label}:")

K1_CNT = (0, 1024); K1_BASE = 2048; K1_DIRB = 3072; K1_BUF = 7168; K1_LDS = K1_BUF + S1

STM = os.environ.get("K1STM", "c")
def gen_k1():
    e = Asm()
    e.raw(kstart("k1_kernel"))
    vA, vB, vC, vD, vL16, vSix, vFreq, vRd2 = 1, 2, 3, 4, 5, 6, 7, 8
    T0 = 10
    IN = 20; OUT = 34; ANG = 48
    D = 56; CA = 70; RK = 84; CS = 98
    RO = 106
    NV = 126
    sWave = 3
    e(f"s_cmpk_ge_u32 s2, {NW1}\ns_cbranch_scc1 k1_done")
    stamp(e, "start")
    code_prefetch(e, "k1", 9, "k3_done" if CPF == "all" else "k1_done")
    e(f"""
    s_load_dwordx2 s[8:9], s[0:1], 8
    s_load_dwordx2 s[12:13], s[0:1], 16
    s_load_dwordx2 s[16:17], s[0:1], 32
    s_load_dwordx2 s[4:5], s[0:1], 48
    s_load_dwordx2 s[20:21], s[0:1], 104
    v_readfirstlane_b32 s3, v0
    v_lshlrev_b32 v{vA}, 4, v0
    v_lshlrev_b32 v{vB}, 3, v0
    v_and_b32 v{T0}, 0x200, v0
    v_lshlrev_b32 v{T0}, 21, v{T0}
    v_lshl_or_b32 v{vC}, v0, 2, v{T0}
    v_lshl_or_b32 v{vD}, v0, 1, v{T0}
    v_and_b32 v{vL16}, 0x3f0, v{vA}
    v_mov_b32 v{vSix}, 6
    v_add_u32 v{vRd2}, 0x8000, v{vA}
    v_mov_b32 v{T0}, 0
    v_mov_b32 v{T0+1}, 0
    v_mov_b32 v{T0+2}, 0
    v_mov_b32 v{T0+3}, 0
    ds_write_b128 v{vL16}, {vr(T0,4)} offset:{K1_CNT[0]}
    s_lshr_b32 s3, s3, 6
    s_mov_b32 s10, {T*4}
    s_mov_b32 s11, 0x00020000
    s_mov_b32 s14, {T*4}
    s_mov_b32 s15, 0x00020000
    s_mov_b32 s18, {T*2}
    s_mov_b32 s19, 0x00020000
    s_mov_b32 s23, 0x00020000
    s_mul_i32 s28, s2, {TPW*TILE*4}
    s_lshr_b32 s29, s28, 1
    s_mul_i32 s30, s2, {TPW*S1}
    s_waitcnt lgkmcnt(0)
    s_load_dword s6, s[4:5], 0
    """)
    def loads(k, r):
        if k >= TPW: return
        bi = k * TILE * 4 + r * 16384
        e(f"s_add_u32 s31, s28, {bi}\ns_add_u32 s32, s29, {bi//2}")
        if r < 3:
            e.vmem(f"buffer_load_dwordx4 {vr(IN+4*r,4)}, v{vA}, s[8:11], s31 offen{LDPOL}", ("L",k,r))
            e.vmem(f"buffer_load_dwordx4 {vr(OUT+4*r,4)}, v{vA}, s[12:15], s31 offen{LDPOL}", ("L",k,r))
            e.vmem(f"buffer_load_dwordx2 {vr(ANG+2*r,2)}, v{vB}, s[16:19], s32 offen{LDPOL}", ("L",k,r))
        else:
            e.vmem(f"buffer_load_dword v{IN+12}, v{vC}, s[8:11], s31 offen{LDPOL}", ("L",k,r))
            e.vmem(f"buffer_load_dword v{OUT+12}, v{vC}, s[12:15], s31 offen{LDPOL}", ("L",k,r))
            e.vmem(f"buffer_load_ushort v{ANG+6}, v{vD}, s[16:19], s32 offen{LDPOL}", ("L",k,r))
    POS = os.environ.get("K1POS", "BGDE")
    def at(pos, k, only=None):
        for r in range(4):
            if POS[r] == pos and (only is None or r == only): loads(k, r)
    loads(0, 0)
    e("s_barrier")
    loads(0, 1)
    add64(e, 24, 20, DIR1)
    e(f"""
    s_mov_b32 s26, {NW1*4096}
    s_mov_b32 s27, 0x00020000
    s_waitcnt lgkmcnt(0)
    s_lshl_b32 s6, s6, 16
    v_mov_b32 v{vFreq}, s6
    """)
    def idx_ops(j):
        e(f"""
        v_lshrrev_b32 v{CA+j}, 4, v{IN+j}
        v_lshrrev_b32 v{D+j}, 8, v{IN+j}
        v_and_b32 v{CA+j}, 0x3fc, v{CA+j}
        v_bfi_b32 v{D+j}, 63, v{IN+j}, v{D+j}
        v_lshl_add_u32 v{D+j}, v{D+j}, 20, v{OUT+j}
        """)
    def cos_pairs(ps):
        t = {p: T0 + 2*i for i, p in enumerate(ps)}
        def each(f):
            for p in ps: e(f(p, t[p], t[p]+1))
        each(lambda p,a,b: f"v_lshlrev_b32 v{a}, 16, v{ANG+p}\nv_and_b32 v{b}, 0xffff0000, v{ANG+p}")
        each(lambda p,a,b: f"v_mul_f32 v{a}, v{vFreq}, v{a}\nv_mul_f32 v{b}, v{vFreq}, v{b}")
        each(lambda p,a,b: f"v_cvt_pk_bf16_f32 v{a}, 0, v{a}\nv_cvt_pk_bf16_f32 v{b}, 0, v{b}")
        each(lambda p,a,b: f"v_mul_f32 v{a}, 0.15915494, v{a}\nv_mul_f32 v{b}, 0.15915494, v{b}")
        each(lambda p,a,b: f"v_fract_f32 v{a}, v{a}\nv_fract_f32 v{b}, v{b}")
        each(lambda p,a,b: f"v_cos_f32 v{a}, v{a}\nv_cos_f32 v{b}, v{b}")
        e("s_nop 0")
        each(lambda p,a,b: f"v_cvt_pk_bf16_f32 v{a}, 0, v{a}\nv_cvt_pk_bf16_f32 v{b}, 0, v{b}")
        each(lambda p,a,b: f"v_cvt_pkrtz_f16_f32 v{CS+p}, v{a}, v{b}")
    def ro_reads():
        for r in range(5):
            e(f"ds_read_b128 {vr(RO+4*r,4)}, v{vA if r < 2 else vRd2} offset:{K1_BUF + (r if r < 2 else r-2)*16384}")
    def store(k, r):
        e(f"s_add_u32 s31, s34, {r*16384}")
        e.vmem(f"buffer_store_dwordx4 {vr(RO+4*r,4)}, v{vA}, s[20:23], s31 offen{STPOL}", ("S", k))
    for k in range(TPW):
        cnt = K1_CNT[k & 1]; cnt_o = K1_CNT[(k + 1) & 1]
        if k > 0: ro_reads()
        if k == 0: loads(0, 2); loads(0, 3)
        else: at("F", k)
        sts = {"a": {0: (0, 1), 1: (2, 3), 2: (4,)}, "b": {0: (0, 1, 2, 3, 4), 1: (), 2: ()}, "c": {0: (0,), 1: (1,), 2: (2,)}}[STM]
        for r in range(3):
            e.waitvm(("L", k, r))
            if r == 0: stamp(e, f"ld0_{k}")
            for j in range(4*r, 4*r+4): idx_ops(j)
            if r == 0 and k > 0: e("s_waitcnt lgkmcnt(0)")
            for j in range(4*r, 4*r+4):
                e(f"ds_add_rtn_u32 v{RK+j}, v{CA+j}, v{vSix} offset:{cnt}")
            cos_pairs([2*r, 2*r+1])
            if k > 0:
                for q in sts[r]: store(k - 1, q)
            at("A", k + 1, r)
        e.waitvm(("L", k, 3))
        e(f"s_cmp_ge_u32 s{sWave}, 8\ns_cbranch_scc1 k1_s13a_{k}")
        idx_ops(12)
        e(f"ds_add_rtn_u32 v{RK+12}, v{CA+12}, v{vSix} offset:{cnt}")
        cos_pairs([6])
        e(f"k1_s13a_{k}:")
        at("A", k + 1, 3)
        at("B", k + 1)
        stamp(e, f"p1e_{k}")
        e("s_waitcnt lgkmcnt(0)\ns_barrier")
        stamp(e, f"b1_{k}")
        c = T0; cp = T0 + 4; sc = T0 + 8; tt = T0 + 9; b = RO
        e(f"ds_read_b128 {vr(c,4)}, v{vL16} offset:{cnt}")
        if STM == "c" and k > 0: store(k - 1, 3); store(k - 1, 4)
        at("C", k + 1)
        e("s_waitcnt lgkmcnt(0)")
        for i in range(4): e(f"v_and_b32 v{cp+i}, 2, v{c+i}")
        for i in range(4): e(f"v_mad_u32_u24 v{cp+i}, v{cp+i}, 3, v{c+i}")
        e(f"v_add_u32 v{tt}, v{cp}, v{cp+1}\nv_add3_u32 v{tt}, v{tt}, v{cp+2}, v{cp+3}\nv_mov_b32 v{sc}, v{tt}")
        wave_scan(e, sc)
        e(f"""
        v_sub_u32 v{b}, v{sc}, v{tt}
        v_readlane_b32 s33, v{sc}, 63
        v_add_u32 v{b}, 2, v{b}
        v_add_u32 v{b+1}, v{b}, v{cp}
        v_add_u32 v{b+2}, v{b+1}, v{cp+1}
        v_add_u32 v{b+3}, v{b+2}, v{cp+2}
        ds_write_b128 v{vL16}, {vr(b,4)} offset:{K1_BASE}
        s_add_u32 s34, s30, {k*S1}
        s_add_u32 s33, s33, 127
        s_and_b32 s33, s33, 0xffffff80
        s_add_u32 s22, s34, s33
        """)
        for j in range(12):
            e(f"ds_read_b32 v{CA+j}, v{CA+j} offset:{K1_BASE}")
        e(f"s_cmp_ge_u32 s{sWave}, 8\ns_cbranch_scc1 k1_s13r_{k}")
        e(f"ds_read_b32 v{CA+12}, v{CA+12} offset:{K1_BASE}")
        e(f"s_branch k1_dutyC_{k}\nk1_s13r_{k}:")
        def dA():
            for i in range(4):
                e(f"v_lshrrev_b32 v{b+i}, 2, v{b+i}\nv_lshl_or_b32 v{b+i}, v{cp+i}, 14, v{b+i}")
            e(f"ds_write_b128 v{vL16}, {vr(b,4)} offset:{K1_DIRB + k*1024}")
        duty(e, 15, sWave, f"k1_dutyA_{k}", dA)
        def dB():
            e(f"""
            s_lshl_b32 s31, s2, 2
            s_add_u32 s31, s31, {k}
            s_mul_i32 s31, s31, 65
            v_lshl_add_u32 v{RO+4}, v{vL16}, 4, s31
            v_mov_b32 v{RO+5}, 0
            """)
            for i in range(4):
                e(f"""
                v_add_u32 v{tt}, {i*64}, v{RO+4}
                v_and_b32 v{tt}, 0x3fff, v{tt}
                v_or_b32 v{tt}, {63<<14}, v{tt}
                v_add_u32 v{sc}, v{b+i}, v{c+i}
                v_cmpx_ne_u32 vcc, v{cp+i}, v{c+i}
                ds_write_b32 v{sc}, v{tt} offset:{K1_BUF}
                ds_write_b16 v{sc}, v{RO+5} offset:{K1_BUF-2}
                s_mov_b64 exec, -1
                """)
        duty(e, 14, sWave, f"k1_dutyB_{k}", dB)
        def dC():
            if k + 1 < TPW:
                for i in range(4): e(f"v_mov_b32 v{c+i}, 0")
                e(f"ds_write_b128 v{vL16}, {vr(c,4)} offset:{cnt_o}")
        duty(e, 13, sWave, f"k1_dutyC_{k}", dC)
        e("s_waitcnt lgkmcnt(0)")
        def scat(j):
            e(f"""
            v_add_u32 v{RK+j}, v{RK+j}, v{CA+j}
            v_and_b32 v{CA+j}, -4, v{RK+j}
            v_sub_u32 v{tt}, v{RK+j}, v{CA+j}
            v_lshl_add_u32 v{RK+j}, v{tt}, 1, v{RK+j}
            ds_write_b32 v{CA+j}, v{D+j} offset:{K1_BUF}
            ds_write_b16{'_d16_hi' if j & 1 else ''} v{RK+j}, v{CS+j//2} offset:{K1_BUF-2}
            """)
        for j in range(12):
            if j == 0: at("G", k + 1)
            if j == 6: at("D", k + 1)
            scat(j)
        e(f"s_cmp_ge_u32 s{sWave}, 8\ns_cbranch_scc1 k1_s13b_{k}")
        scat(12)
        e(f"k1_s13b_{k}:")
        at("E", k + 1)
        e("s_waitcnt lgkmcnt(0)\ns_barrier")
        stamp(e, f"b2_{k}")
    ro_reads()
    for r in range(5):
        e(f"s_waitcnt lgkmcnt({4-r})"); store(TPW - 1, r)
    e(f"""
    s_cmp_lt_u32 s{sWave}, 12
    s_cbranch_scc1 k1_fin
    v_and_b32 v{T0+4}, 0x3fc, v{vC}
    v_and_b32 v{T0+5}, 0xff0, v{vA}
    s_lshl_b32 s31, s2, 12
    """)
    for k in range(TPW): e(f"ds_read_b32 v{T0+k}, v{T0+4} offset:{K1_DIRB + k*1024}")
    e(f"""
    s_waitcnt lgkmcnt(0)
    buffer_store_dwordx4 {vr(T0,4)}, v{T0+5}, s[24:27], s31 offen{STPOL}
    k1_fin:
    """)
    stamp_out(e, 0)
    e("k1_done:\ns_endpgm")
    return e.text(), NV, 96 if CPF else 40

def map_part1(e, vN, vScan, vRk, t, sWave, sOwnN, sOwnR, WTOT, extra=None):
    e(f"""
    v_cmp_lt_u32 vcc, 0, v{vN}
    v_mov_b32 v{vScan}, v{vN}
    s_nop 0
    v_mbcnt_lo_u32_b32 v{vRk}, vcc_lo, 0
    v_mbcnt_hi_u32_b32 v{vRk}, vcc_hi, v{vRk}
    s_bcnt1_i32_b64 s{sOwnR}, vcc
    """)
    wave_scan(e, vScan)
    e(f"""
    s_lshl_b32 s31, s{sWave}, 4
    v_readlane_b32 s{sOwnN}, v{vScan}, 63
    v_mov_b32 v{t+2}, s31
    v_mov_b32 v{t+1}, s{sOwnR}
    v_mov_b32 v{t}, s{sOwnN}
    ds_write_b64 v{t+2}, {vr(t,2)} offset:{WTOT}
    """)
    if extra is not None:
        e(f"v_mov_b32 v{t+3}, s{extra}\nds_write_b32 v{t+2}, v{t+3} offset:{WTOT+8}")

def map_part2(e, vN, vScan, vRk, t, vL16, sWave, sOwnN, sOwnR, sU, WTOT, sMin=None):
    e(f"""
    v_and_b32 v{t}, 0xf0, v{vL16}
    ds_read_b128 {vr(t,4)}, v{t} offset:{WTOT}
    s_waitcnt lgkmcnt(0)
    """)
    if sMin is None: row_scan(e, [t, t+1])
    else: row_scan(e, [t, t+1, t+2], ["v_add_u32", "v_add_u32", "v_min_u32"])
    e(f"""
    v_sub_u32 v{vScan}, v{vScan}, v{vN}
    v_readlane_b32 s{sU}, v{t}, 15
    v_readlane_b32 s31, v{t}, s{sWave}
    v_readlane_b32 s32, v{t+1}, s{sWave}
    """)
    if sMin is not None: e(f"v_readlane_b32 s{sMin}, v{t+2}, 15")
    e(f"""
    s_sub_u32 s31, s31, s{sOwnN}
    s_sub_u32 s32, s32, s{sOwnR}
    v_add_u32 v{vScan}, s31, v{vScan}
    v_add_u32 v{vRk}, s32, v{vRk}
    """)

def map_part3(e, pfx, vN, vF, vRk, t, MAP):
    e(f"""
    v_add_u32 v{t}, v{vF}, v{vN}
    v_add_u32 v{t+1}, -1, v{t}
    v_lshrrev_b32 v{t+2}, 2, v{t+1}
    v_and_b32 v{t+2}, -16, v{t+2}
    v_lshrrev_b32 v{t+3}, 3, v{t+1}
    v_and_or_b32 v{t+2}, v{t+3}, 4, v{t+2}
    v_lshlrev_b32 v{t+1}, v{t+1}, 1
    ds_or_b32 v{t+2}, v{t+1} offset:{MAP}
    v_add_u32 v{t+1}, 63, v{vF}
    v_and_b32 v{t+1}, 0xffffffc0, v{t+1}
    {pfx}_rloop:
    v_cmpx_lt_u32 vcc, v{t+1}, v{t}
    s_cbranch_execz {pfx}_rdone
    v_lshrrev_b32 v{t+2}, 2, v{t+1}
    ds_write_b32 v{t+2}, v{vRk} offset:{MAP+8}
    v_add_u32 v{t+1}, 64, v{t+1}
    s_branch {pfx}_rloop
    {pfx}_rdone:
    s_mov_b64 exec, -1
    """)

def sel_wT(e, dst, sW, vSel, vHi, t):
    for p in range(2):
        for k in range(2):
            r = sW + 4*p + 2*k
            e(f"v_mov_b32 v{t+k}, s{r}\nv_bfi_b32 v{t+k}, v{vHi}, s{r+1}, v{t+k}")
        e(f"v_perm_b32 v{dst+p}, v{t+1}, v{t}, v{vSel}")

def sel_consts(e, vSel, vHi):
    e(f"""
    v_bfe_i32 v{vSel}, v0, 0, 1
    v_bfe_i32 v{vHi}, v0, 1, 1
    v_and_b32 v{vSel}, 0x02020202, v{vSel}
    v_add_u32 v{vSel}, 0x05040100, v{vSel}
    """)

MFMA = "v_mfma_f32_4x4x4_16b_bf16"

K2_CNT = (0, 1024); K2_BASE = 2048; K2_WTOT = 3072; K2_DIRB = 3328; K2_DEL = K2_DIRB + 4096; K2_MAP = K2_DEL + 4096
K2_TAB = K2_MAP + 4 * CB2 * 16 + 112 * 16
K2_BUF = K2_TAB + 3136 * 8
K2_LDS = K2_BUF + S2
assert K2_BUF % 16 == 0 and K2_LDS <= 163840 and K2_BUF < 65536 - 16384

def gen_k2():
    e = Asm()
    e.raw(kstart("k2_kernel"))
    vA, vA2, vL16, vEight, vQ, vEnt, vA3 = 1, 2, 3, 4, 5, 6, 7
    T0 = 8
    vA4 = 18
    RAW = 20
    V = 48
    CA = 76; RK = 90
    RO = 104
    NV = 120
    sWave, sB, sU, sCB, sOwnN, sOwnR, sMsk, sBias = 3, 35, 36, 37, 38, 39, 40, 41
    MK = (42, 56)
    e(f"s_cmpk_ge_u32 s2, 256\ns_cbranch_scc1 k2_done")
    stamp(e, "start")
    code_prefetch(e, "k2", 19, "k2_done")
    e(f"""
    s_load_dwordx2 s[8:9], s[0:1], 104
    s_load_dwordx2 s[12:13], s[0:1], 0
    s_load_dwordx2 s[4:5], s[0:1], 72
    v_readfirstlane_b32 s3, v0
    s_and_b32 s{sB}, s2, 7
    s_lshl_b32 s{sB}, s{sB}, 5
    s_lshr_b32 s31, s2, 3
    s_add_u32 s{sB}, s{sB}, s31
    {f"s_mov_b32 s{sB}, s2" if "noxcd" in EXP else ""}
    s_lshr_b32 s3, s3, 6
    v_lshlrev_b32 v{vA}, 4, v0
    v_and_b32 v{T0+1}, 3, v0
    v_lshrrev_b32 v{T0}, 2, v0
    v_lshlrev_b32 v{T0}, 12, v{T0}
    v_lshl_or_b32 v{T0}, v{T0+1}, 2, v{T0}
    v_and_b32 v{vL16}, 0x3f0, v{vA}
    s_lshl_b32 s31, s{sB}, 4
    s_mov_b32 s18, {NW1*4096}
    s_mov_b32 s19, 0x00020000
    s_waitcnt lgkmcnt(0)
    """)
    add64(e, 16, 8, DIR1)
    vE = T0 + 4
    e.vmem(f"buffer_load_dword v{vE}, v{T0}, s[16:19], s31 offen", "dir")
    e(f"""
    v_add_u32 v{vA2}, 0x8000, v{vA}
    v_add_u32 v{vA3}, 0x10000, v{vA}
    v_add_u32 v{vA4}, 0x18000, v{vA}
    v_mov_b32 v{vEight}, 8
    s_load_dwordx8 s[72:79], s[4:5], 0
    v_lshrrev_b32 v{RO+1}, 1, v{vL16}
    s_mov_b32 s{sMsk}, 0x00070007
    s_mov_b32 s{sBias}, 0x10000
    s_mov_b32 s14, {E*8}
    s_mov_b32 s15, 0x00020000
    s_mov_b32 s10, {REC1_SZ}
    s_mov_b32 s11, 0x00020000
    """)
    add64(e, 20, 8, REC2)
    add64(e, 24, 8, DIR2)
    e(f"""
    s_mov_b32 s23, 0x00020000
    s_mov_b32 s26, {1<<20}
    s_mov_b32 s27, 0x00020000
    s_mul_i32 s30, s{sB}, {4*S2}
    v_mov_b32 v{V}, 0
    v_mov_b32 v{V+1}, 0
    v_mov_b32 v{V+2}, 0
    v_mov_b32 v{V+3}, 0
    ds_write_b128 v{vL16}, {vr(V,4)} offset:{K2_CNT[0]}
    v_cmpx_gt_u32 vcc, {(K2_TAB-K2_MAP)//16}, v0
    ds_write_b128 v{vA}, {vr(V,4)} offset:{K2_MAP}
    s_mov_b64 exec, -1
    """)
    vN, vF, vRk = T0 + 5, T0 + 6, T0 + 7
    e.waitvm("dir")
    stamp(e, "dir")
    e(f"""
    v_lshrrev_b32 v{vN}, 16, v{vE}
    v_mul_u32_u24 v{vN}, 21846, v{vN}
    v_lshrrev_b32 v{vN}, 16, v{vN}
    """)
    map_part1(e, vN, vF, vRk, T0, sWave, sOwnN, sOwnR, K2_WTOT)
    e("s_waitcnt lgkmcnt(0)\ns_barrier")
    M = CA; WD = CA + 8
    e(f"s_lshl_b32 s31, s{sWave}, 17\ns_lshl_b32 s32, s{sB}, 9\ns_add_u32 s31, s31, s32")
    for j in range(4):
        e.vmem(f"buffer_load_dwordx2 {vr(M+2*j,2)}, v{RO+1}, s[12:15], s31 offen", "m")
        if j < 3: e(f"s_add_u32 s31, s31, {16<<17}")
    map_part2(e, vN, vF, vRk, T0, vL16, sWave, sOwnN, sOwnR, sU, K2_WTOT)
    e(f"""
    s_cmp_gt_u32 s{sU}, {4*CB2*64}
    s_cbranch_scc1 k2_overflow
    s_add_u32 s{sCB}, s{sU}, 255
    s_lshr_b32 s{sCB}, s{sCB}, 8
    v_and_b32 v{vE}, 0xffff, v{vE}
    v_mul_u32_u24 v{T0}, {S1//4}, v0
    v_mul_u32_u24 v{T0+1}, 3, v{vF}
    v_add_u32 v{vE}, v{vE}, v{T0}
    v_sub_u32 v{vE}, v{vE}, v{T0+1}
    v_lshlrev_b32 v{vE}, 2, v{vE}
    v_lshlrev_b32 v{T0}, 2, v{vRk}
    v_cmpx_lt_u32 vcc, 0, v{vN}
    ds_write_b32 v{T0}, v{vE} offset:{K2_DEL}
    """)
    map_part3(e, "k2", vN, vF, vRk, T0, K2_MAP)
    e(f"""
    v_mul_u32_u24 v{vQ}, 12, v0
    s_lshl_b32 s31, s{sWave}, 4
    v_mov_b32 v{vEnt}, s31
    s_waitcnt lgkmcnt(0)
    s_barrier
    """)
    stamp(e, "map")
    def addr_a(j):
        mk = MK[j & 1]
        for r in range(7):
            e(f"ds_read_b128 {vr(V+4*r,4)}, v{vEnt} offset:{K2_MAP + r*256}")
        e(f"""
        s_mul_i32 s31, s{sCB}, {64*j}
        s_sub_i32 s31, s{sU}, s31
        s_lshl_b32 s32, s{sCB}, 6
        s_min_i32 s31, s31, s32
        """)
        for r in range(7):
            e(f"v_cmp_gt_i32_e64 {sr(mk+2*r,2)}, s31, v0")
            e(f"v_mov_b32 v{RAW+4*r+3}, 0x80000000")
            if r < 6: e("s_sub_i32 s31, s31, 1024")
    def addr_b(j):
        for r in range(7):
            e(f"""
            v_mbcnt_lo_u32_b32 v{V+4*r+2}, v{V+4*r}, v{V+4*r+2}
            v_mbcnt_hi_u32_b32 v{V+4*r+2}, v{V+4*r+1}, v{V+4*r+2}
            v_lshlrev_b32 v{V+4*r+2}, 2, v{V+4*r+2}
            ds_read_b32 v{V+4*r+2}, v{V+4*r+2} offset:{K2_DEL}
            """)
    def addr_c(j):
        mk = MK[j & 1]
        for r in range(7):
            e(f"""
            s_mov_b64 exec, {sr(mk+2*r,2)}
            s_mov_b32 s31, {r*12288}
            v_add3_u32 v{RAW+4*r+3}, v{V+4*r+2}, v{vQ}, s31
            """)
        e(f"""
        s_mov_b64 exec, -1
        s_lshl_b32 s31, s{sCB}, 4
        s_mul_i32 s32, s{sCB}, 768
        v_add_u32 v{vEnt}, s31, v{vEnt}
        v_add_u32 v{vQ}, s32, v{vQ}
        """)
    def load(j, r):
        if j >= 4: return
        e.vmem(f"buffer_load_dwordx3 {vr(RAW+4*r,3)}, v{RAW+4*r+3}, s[8:11], 0 offen{RDPOL}", ("L", j, r))
    W = "s_waitcnt lgkmcnt(0)"
    addr_a(0); e(W); addr_b(0); e(W); addr_c(0)
    for r in range(3): load(0, r)
    stamp(e, "ld0iss")
    sel_consts(e, T0 + 2, T0 + 3)
    sel_wT(e, WD, 72, T0 + 2, T0 + 3, T0)
    e("s_nop 0")
    e.waitvm("m")
    MD = RO
    vMax = T0 + 4
    for j in range(4): e(f"{MFMA} {vr(MD+4*j,4)}, {vr(WD,2)}, {vr(M+2*j,2)}, 0")
    e(f"v_mov_b32 v{vMax}, 0\ns_nop 0")
    def md_row(j):
        for h in range(2):
            a = MD + 4*j + 2*h
            e(f"""
            v_cvt_pk_bf16_f32 v{a}, 0, v{a}
            v_cvt_pk_bf16_f32 v{a+1}, 0, v{a+1}
            v_and_b32 v{T0}, 0x7fffffff, v{a}
            v_and_b32 v{T0+1}, 0x7fffffff, v{a+1}
            v_max3_u32 v{vMax}, v{T0}, v{T0+1}, v{vMax}
            """)
    for j in range(3): md_row(j)
    duty(e, 0, sWave, "k2_md3", lambda: md_row(3))
    wave_scan(e, vMax, "v_max_u32")
    e(f"""
    s_lshl_b32 s31, s{sWave}, 4
    v_readlane_b32 s32, v{vMax}, 63
    v_mov_b32 v{T0}, s31
    v_and_b32 v{T0+2}, 0xf0, v{vL16}
    v_mov_b32 v{T0+1}, s32
    ds_write_b32 v{T0}, v{T0+1} offset:{K2_WTOT+8}
    s_waitcnt lgkmcnt(0)
    s_barrier
    ds_read_b32 v{vMax}, v{T0+2} offset:{K2_WTOT+8}
    s_waitcnt lgkmcnt(0)
    """)
    row_scan(e, [vMax], ["v_max_u32"])
    e(f"""
    v_lshrrev_b32 v{T0+2}, 1, v{vA}
    v_readlane_b32 s32, v{vMax}, 15
    s_nop 0
    s_lshr_b32 s32, s32, 23
    s_sub_u32 s33, 268, s32
    s_min_u32 s33, s33, 254
    s_cmp_eq_u32 s32, 255
    s_cselect_b32 s34, 0, s33
    s_lshl_b32 s32, s33, 23
    s_mov_b32 s33, s32
    """)
    def tab_row(j):
        for h in range(2):
            a = MD + 4*j + 2*h
            e(f"v_pk_mul_f32 {vr(a,2)}, {vr(a,2)}, s[32:33]\nv_cvt_pkrtz_f16_f32 v{T0+h}, v{a}, v{a+1}")
        e(f"ds_write_b64 v{T0+2}, {vr(T0,2)} offset:{K2_TAB + j*8192}")
    for j in range(3): tab_row(j)
    duty(e, 0, sWave, "k2_tab3", lambda: tab_row(3))
    e("s_waitcnt lgkmcnt(0)\ns_barrier")
    for r in range(3, 7): load(0, r)
    stamp(e, "tab")
    def stage_a(j, r, cnt):
        e.waitvm(("L", j, r))
        e(f"s_mov_b64 exec, {sr(MK[j&1]+2*r,2)}")
        for h in range(2):
            d = RAW + 4*r + 2*h; i = 2*r + h
            e(f"""
            v_lshrrev_b32 v{T0+h}, 17, v{d}
            v_lshrrev_b32 v{CA+i}, 4, v{d}
            v_and_b32 v{T0+h}, 0x7ff8, v{T0+h}
            v_and_b32 v{CA+i}, 0x3fc, v{CA+i}
            ds_read_b64 {vr(V+2*i,2)}, v{T0+h} offset:{K2_TAB}
            ds_add_rtn_u32 v{RK+i}, v{CA+i}, v{vEight} offset:{cnt}
            v_lshl_add_u32 v{T0+2+h}, v{d}, 2, s{sBias}
            v_bfi_b32 v{d}, 63, v{d}, v{T0+2+h}
            """)
    def stage_b(j, r):
        for h in range(2):
            d = RAW + 4*r + 2*h; i = 2*r + h; c = RAW + 4*r + 1
            sel = f"op_sel:[0,{h}] op_sel_hi:[1,{h}]"
            e(f"""
            v_pk_mul_f16 v{V+2*i}, v{V+2*i}, v{c} {sel}
            v_pk_mul_f16 v{V+2*i+1}, v{V+2*i+1}, v{c} {sel}
            v_lshrrev_b32 v{T0+h}, 3, v{d}
            v_add_u32 v{V+2*i}, 0x40004, v{V+2*i}
            v_add_u32 v{V+2*i+1}, 0x40004, v{V+2*i+1}
            v_bfi_b32 v{V+2*i}, s{sMsk}, v{d}, v{V+2*i}
            v_bfi_b32 v{V+2*i+1}, s{sMsk}, v{T0+h}, v{V+2*i+1}
            """)
    def ro_read(r):
        e(f"ds_read_b128 {vr(RO+4*(r%4),4)}, v{(vA, vA2, vA3, vA4)[r//2]} offset:{K2_BUF + (r % 2) * 16384}")
    def store(j, r):
        e(f"s_add_u32 s31, s29, {r*16384}")
        e.vmem(f"buffer_store_dwordx4 {vr(RO+4*(r%4),4)}, v{vA}, s[20:23], s31 offen{STPOL}", ("S", j))
    NPRE = int(os.environ.get("NPRE", 3))
    for j in range(4):
        cnt = K2_CNT[j & 1]; cnt_o = K2_CNT[(j + 1) & 1]; mk = MK[j & 1]
        if j > 0:
            for r in range(4): ro_read(r)
        if j < 3: addr_a(j + 1)
        e(W)
        if j < 3: addr_b(j + 1)
        if j > 0: store(j - 1, 0); store(j - 1, 1)
        if j < 3: e(W); addr_c(j + 1)
        for r in (0, 1, 2): stage_a(j, r, cnt)
        e("s_mov_b64 exec, -1")
        if j > 0:
            store(j - 1, 2); store(j - 1, 3)
            for r in (4, 5, 6): ro_read(r)
        e(W)
        for r in (0, 1, 2): stage_b(j, r)
        for r in (3, 4, 5): stage_a(j, r, cnt)
        e("s_mov_b64 exec, -1")
        if j > 0:
            for r in (4, 5, 6): store(j - 1, r)
        e(W)
        for r in (3, 4, 5): stage_b(j, r)
        e.waitvm(("L", j, 6))
        e(f"s_cmp_eq_u64 {sr(mk+12,2)}, 0\ns_cbranch_scc1 k2_r6_{j}")
        stage_a(j, 6, cnt)
        e("s_mov_b64 exec, -1\ns_waitcnt lgkmcnt(0)")
        stage_b(j, 6)
        e(f"k2_r6_{j}:")
        for r in range(NPRE): load(j + 1, r)
        stamp(e, f"p1e_{j}")
        e("s_barrier")
        stamp(e, f"b1_{j}")
        c = T0; cp = T0 + 4; sc = T0 + 8; tt = T0 + 9; b = RO
        e(f"ds_read_b128 {vr(c,4)}, v{vL16} offset:{cnt}\ns_waitcnt lgkmcnt(0)")
        for i in range(4): e(f"v_and_b32 v{cp+i}, 8, v{c+i}")
        for i in range(4): e(f"v_add_u32 v{cp+i}, v{cp+i}, v{c+i}")
        e(f"v_add_u32 v{tt}, v{cp}, v{cp+1}\nv_add3_u32 v{tt}, v{tt}, v{cp+2}, v{cp+3}\nv_mov_b32 v{sc}, v{tt}")
        wave_scan(e, sc)
        e(f"""
        v_sub_u32 v{b}, v{sc}, v{tt}
        v_readlane_b32 s33, v{sc}, 63
        v_add_u32 v{b+1}, v{b}, v{cp}
        v_add_u32 v{b+2}, v{b+1}, v{cp+1}
        v_add_u32 v{b+3}, v{b+2}, v{cp+2}
        ds_write_b128 v{vL16}, {vr(b,4)} offset:{K2_BASE}
        s_add_u32 s29, s30, {j*S2}
        s_add_u32 s33, s33, 127
        s_and_b32 s33, s33, 0xffffff80
        s_add_u32 s22, s29, s33
        """)
        for r in range(7):
            e(f"s_mov_b64 exec, {sr(mk+2*r,2)}")
            for h in range(2): e(f"ds_read_b32 v{CA+2*r+h}, v{CA+2*r+h} offset:{K2_BASE}")
        e(f"s_mov_b64 exec, -1\ns_cmp_lt_u32 s{sWave}, 13\ns_cbranch_scc1 k2_dutyC_{j}")
        def dA():
            if j == 0: e("s_lshl_b32 s31, s34, 26")
            elif j == 1: e("s_lshr_b32 s31, s34, 6\ns_lshl_b32 s31, s31, 26")
            else: e("s_mov_b32 s31, 0")
            for i in range(4):
                e(f"v_lshrrev_b32 v{b+i}, 4, v{b+i}\nv_lshl_or_b32 v{b+i}, v{cp+i}, 9, v{b+i}\nv_or_b32 v{b+i}, s31, v{b+i}")
            e(f"ds_write_b128 v{vL16}, {vr(b,4)} offset:{K2_DIRB + j*1024}")
        duty(e, 15, sWave, f"k2_dutyA_{j}", dA)
        def dB():
            e(f"""
            s_lshl_b32 s31, s{sB}, 2
            s_add_u32 s31, s31, {j}
            s_bfe_u32 s32, s31, 0x30003
            s_and_b32 s31, s31, 7
            v_mov_b32 v{sc}, s31
            v_mov_b32 v{tt}, s32
            """)
            for i in range(4):
                e(f"""
                v_add_u32 v{b+i}, v{b+i}, v{c+i}
                v_cmpx_ne_u32 vcc, v{cp+i}, v{c+i}
                ds_write_b64 v{b+i}, {vr(sc,2)} offset:{K2_BUF}
                s_mov_b64 exec, -1
                """)
        duty(e, 14, sWave, f"k2_dutyB_{j}", dB)
        def dC():
            if j < 3:
                for i in range(4): e(f"v_mov_b32 v{c+i}, 0")
                e(f"ds_write_b128 v{vL16}, {vr(c,4)} offset:{cnt_o}")
        duty(e, 13, sWave, f"k2_dutyC_{j}", dC)
        e(W)
        rest = list(range(NPRE, 7))
        for r in range(7):
            e(f"s_mov_b64 exec, {sr(mk+2*r,2)}")
            for h in range(2):
                i = 2*r + h
                e(f"v_add_u32 v{RK+i}, v{RK+i}, v{CA+i}\nds_write_b64 v{RK+i}, {vr(V+2*i,2)} offset:{K2_BUF}")
            if r >= 7 - len(rest) - 1 and rest and j < 3:
                e("s_mov_b64 exec, -1"); load(j + 1, rest.pop(0))
        e("s_mov_b64 exec, -1")
        for r in rest: load(j + 1, r)
        e("s_waitcnt lgkmcnt(0)\ns_barrier")
        stamp(e, f"b2_{j}")
    R = V
    for r in range(7):
        e(f"ds_read_b128 {vr(R+4*r,4)}, v{(vA, vA2, vA3, vA4)[r//2]} offset:{K2_BUF + (r % 2) * 16384}")
    for r in range(7):
        e(f"s_add_u32 s31, s29, {r*16384}\ns_waitcnt lgkmcnt({6-r})")
        e(f"buffer_store_dwordx4 {vr(R+4*r,4)}, v{vA}, s[20:23], s31 offen{STPOL}")
    e(f"""
    s_cmp_lt_u32 s{sWave}, 12
    s_cbranch_scc1 k2_fin
    v_lshrrev_b32 v{T0+4}, 2, v{vA}
    v_and_b32 v{T0+4}, 0x3fc, v{T0+4}
    """)
    for k in range(4): e(f"ds_read_b32 v{T0+k}, v{T0+4} offset:{K2_DIRB + k*1024}")
    e(f"""
    s_waitcnt lgkmcnt(0)
    s_branch k2_dirst
    k2_overflow:
    v_mov_b32 v{T0}, 0
    v_mov_b32 v{T0+1}, 0
    v_mov_b32 v{T0+2}, 0
    v_mov_b32 v{T0+3}, 0
    k2_dirst:
    v_and_b32 v{T0+5}, 0xff0, v{vA}
    s_lshl_b32 s31, s{sB}, 12
    buffer_store_dwordx4 {vr(T0,4)}, v{T0+5}, s[24:27], s31 offen{STPOL}
    k2_fin:
    """)
    stamp_out(e, 1)
    e("k2_done:\ns_endpgm")
    return e.text(), NV, 96 if CPF else 80

from gb2k3 import *

if __name__ == "__main__":
    which = sys.argv[1] if len(sys.argv) > 1 else "123"
    ks = []
    if "1" in which: ks.append(("k1_kernel", gen_k1(), NW1, 1024, K1_LDS))
    if "2" in which: ks.append(("k2_kernel", gen_k2(), 256, 1024, K2_LDS))
    if "3" in which: ks.append(("k3_kernel", gen_k3(sys.modules[__name__]), 256, 1024, K3_LDS))
    emit(ks)
```

```python
from asmlib import *
K2_CNT = 0; K2_BASE = 1024; K2_WTOT = 2048; K2_DIRB = 2112; K2_DEL = K2_DIRB + 4096
DELW = 512
K2_MAP = K2_DEL + 16 * DELW
MAPW = 35 * 16
K2_TAB = K2_MAP + 16 * MAPW
K2_BUF = K2_TAB + 3136 * 8
def k2_lds(g): return K2_BUF + 2 * g.H2

def gen_k2(g):
    MFMA, duty, W, H2 = g.MFMA, g.duty, g.W, g.H2
    assert K2_BUF % 16 == 0 and k2_lds(g) <= 163840
    SC = g.sched(os.environ.get("K2S", "F:S0,S1 P:S6 B:S2 C:L0,L1,L2 G:S3 H:S4 D:L3,L4,S5 E:L5,L6"))
    e = Asm()
    e.raw(kstart("k2_kernel"))
    vA, vLA, vL16, vEight, vQ, vEnt, vGA = 1, 2, 3, 4, 5, 6, 7
    T0 = 8
    vHalf, vLane = 18, 19
    RAW = 20
    V = 48
    CA = 76; RK = 90
    RO = 104
    CP = 120
    TA = 124
    vLB = vA
    NV = 126
    sWave, sB, sU, sNch, sAcc, sMapW, sMsk, sBias, sJ, sBad, sHalf, sI, sGap = 3, 35, 36, 37, 38, 39, 40, 41, 28, 70, 71, 30, 27
    MK = 42; MKN = 56
    order = "FPBCGHDE"
    seq = [op for p in order for op in SC.get(p, []) if op[0] != "W"]
    st_order = [int(op[1]) for op in seq if op[0] == "S"]
    assert sorted(st_order) == list(range(7)) and [int(op[1]) for op in seq if op[0] == "L"] == list(range(7))
    buf = {r: n % 4 for n, r in enumerate(st_order)}
    pos_of = {op: p for p in order for op in SC.get(p, [])}
    for r in st_order[:3]: assert pos_of[f"S{r}"] in "FP", "three stores must leave before the second read-out"
    assert pos_of[f"S{st_order[3]}"] in "FPBC"
    for r in st_order[4:]: assert pos_of[f"S{r}"] not in "FP"
    for r in range(3): assert pos_of[f"L{r}"] in "CGHDE"
    for r in range(3, 7): assert pos_of[f"L{r}"] in "DE"
    e(f"s_cmpk_ge_u32 s2, 256\ns_cbranch_scc1 k2_done")
    stamp(e, "start")
    e(f"""
    s_load_dwordx2 s[8:9], s[0:1], 104
    s_load_dwordx2 s[12:13], s[0:1], 0
    s_load_dwordx2 s[4:5], s[0:1], 72
    v_readfirstlane_b32 s3, v0
    """)
    g.bucket_id(e, sB)
    vE, vDl, vBs = T0 + 4, T0 + 8, T0 + 9
    e("s_lshr_b32 s3, s3, 6")
    g.seg_ids(e, vDl, T0 + 1, vE, T0, sWave)
    e(f"""
    v_lshl_add_u32 v{vDl}, v{vDl}, 2, v{T0+1}
    v_lshlrev_b32 v{vA}, 4, v0
    s_mov_b32 s10, {g.WSUSE}
    s_mov_b32 s11, 0x00020000
    s_mov_b32 s14, {E*8}
    s_mov_b32 s15, 0x00020000
    v_and_b32 v{vL16}, 0x3f0, v{vA}
    v_lshrrev_b32 v{RO+1}, 1, v{vL16}
    s_waitcnt lgkmcnt(0)
    """)
    g.ws_align(e, 8)
    g.bucket_flip(e, sB, 8, T0, vL16)
    e(f"s_lshl_b32 s32, s{sB}, 4\ns_add_u32 s32, s32, {g.DIR1}")
    e.vmem(f"buffer_load_dword v{vE}, v{vE}, s[8:11], s32 offen", "dir")
    M = CA; WD = CA + 8
    e(f"""
    s_lshl_b32 s31, s{sWave}, 17
    s_lshl_b32 s32, s{sB}, 9
    s_add_u32 s31, s31, s32
    s_barrier
    """)
    for j in range(4):
        e.vmem(f"buffer_load_dwordx2 {vr(M+2*j,2)}, v{RO+1}, s[12:15], s31 offen", "m")
        if j < 3: e(f"s_add_u32 s31, s31, {16<<17}")
    code_prefetch(e, "k2", RO + 2, "k2_done")
    g.img_base_v(e, vBs, vDl, T0, sB, 25, g.IMG1, 0)
    e(f"""
    v_and_b32 v{vGA}, 0x1fff, v{vA}
    v_lshrrev_b32 v{T0}, 9, v0
    v_mul_u32_u24 v{T0}, {H2}, v{T0}
    v_add_u32 v{vLA}, v{vGA}, v{T0}
    v_add_u32 v{vLA}, {K2_BUF}, v{vLA}
    v_bfe_u32 v{T0}, v0, 5, 1
    v_mul_u32_u24 v{vHalf}, {H2}, v{T0}
    v_mov_b32 v{vEight}, 8
    v_lshrrev_b32 v{vLane}, 4, v{vL16}
    s_mov_b32 s{sMsk}, 0x00070007
    s_mov_b32 s{sBias}, 0x10000
    s_mov_b32 s{sGap}, {16384 - g.BLK1}
    s_mul_i32 s{sMapW}, s{sWave}, {MAPW}
    s_mov_b32 s20, s8
    s_mov_b32 s21, s9
    s_mov_b32 s22, 0
    s_mov_b32 s23, 0x00020000
    s_lshl_b32 s{sI}, s2, 2
    s_lshr_b32 s{sHalf}, s{sWave}, 3
    s_mov_b64 s[80:81], 0
    s_mov_b64 s[82:83], 0
    s_mov_b32 s{sJ}, 0
    """)
    for i in range(4): e(f"v_mov_b32 v{CP+i}, 0")
    for i in range(3): e(f"v_mov_b32 v{V+i}, 0")
    e(f"""
    v_bfrev_b32 v{V+3}, 1
    v_add_u32 v{T0}, s{sMapW}, v{vL16}
    ds_write_b128 v{vL16}, {vr(CP,4)} offset:{K2_CNT}
    v_cmpx_gt_u32 vcc, {MAPW//16}, v{vLane}
    ds_write_b128 v{T0}, {vr(V,4)} offset:{K2_MAP}
    s_mov_b64 exec, -1
    """)
    vN, vF, vRk = T0 + 5, T0 + 6, T0 + 7
    e.waitvm("dir")
    stamp(e, "dir")
    e(f"v_bfe_u32 v{vN}, v{vE}, 13, 13")
    g.wmap_scan(e, vN, vF, vRk, sU)
    e(f"""
    v_and_b32 v{vE}, 0x1fff, v{vE}
    s_lshl_b32 s31, s{sWave}, 6
    v_add_u32 v{vRk}, s31, v{vRk}
    s_cmp_gt_u32 s{sU}, {28*64}
    s_cselect_b32 s{sBad}, 1, 0
    s_cselect_b32 s{sU}, 0, s{sU}
    s_cbranch_scc1 k2_nomap
    v_sub_u32 v{vDl}, v{vE}, v{vF}
    v_lshlrev_b32 v{T0}, 3, v{vRk}
    v_cmpx_lt_u32 vcc, 0, v{vN}
    ds_write_b64 v{T0}, {vr(vDl,2)} offset:{K2_DEL}
    """)
    g.wmap_marks(e, "k2", vN, vF, vRk, T0, sMapW, K2_MAP)
    e(f"""
    k2_nomap:
    s_add_u32 s{sNch}, s{sU}, 63
    s_lshr_b32 s{sNch}, s{sNch}, 6
    s_and_b32 s{sAcc}, s{sWave}, 3
    """)
    stamp(e, "map")
    def nxt_setup():
        e(f"""
        s_lshr_b32 s31, s{sAcc}, 2
        s_add_u32 s{sAcc}, s{sAcc}, s{sNch}
        s_lshl_b32 s32, s31, 4
        s_add_u32 s32, s32, s{sMapW}
        v_mov_b32 v{vEnt}, s32
        s_lshl_b32 s31, s31, 6
        v_add_u32 v{vQ}, s31, v{vLane}
        s_lshr_b32 s32, s{sAcc}, 2
        s_lshl_b32 s32, s32, 6
        s_min_u32 s32, s32, s{sU}
        """)
        for r in range(7):
            e(f"v_cmp_gt_i32_e64 {sr(MKN+2*r,2)}, s32, v{vQ}")
            if r < 6: e("s_sub_i32 s32, s32, 64")
    def ent(rs):
        for r in rs: e(f"ds_read_b128 {vr(RAW+4*r,4)}, v{vEnt} offset:{K2_MAP + r*16}")
    def dels(rs):
        for r in rs:
            q = RAW + 4*r
            e(f"""
            v_mbcnt_lo_u32_b32 v{q+2}, v{q}, v{q+2}
            v_mbcnt_hi_u32_b32 v{q+2}, v{q+1}, v{q+2}
            v_lshlrev_b32 v{q+2}, 3, v{q+2}
            ds_read_b64 {vr(q,2)}, v{q+2} offset:{K2_DEL}
            """)
    assert all((u * 6169) >> 22 == u // 680 for u in range(3401))
    def load(r):
        q = RAW + 4*r
        e(f"""
        s_mov_b64 exec, {sr(MKN+2*r,2)}
        s_movk_i32 s31, {r*64}
        v_add3_u32 v{q}, v{q}, v{vQ}, s31
        v_mul_u32_u24 v{q+2}, 6169, v{q}
        v_mad_u32_u24 v{q}, v{q}, 12, v{q+1}
        v_lshrrev_b32 v{q+2}, 22, v{q+2}
        v_mad_u32_u24 v{q+3}, v{q+2}, s{sGap}, v{q}
        s_mov_b64 exec, -1
        """)
        e.vmem(f"buffer_load_dwordx3 {vr(q,3)}, v{q+3}, s[8:11], 0 offen{g.RDPOL}", ("L", r))
    def ro_read(r):
        e(f"ds_read_b128 {vr(RO+4*buf[r],4)}, v{vLB if r & 1 else vLA} offset:{r*8192}")
    def store(r):
        e(f"s_add_u32 s31, s{80 + 2*(r&1)}, {r*16384}\ns_mov_b32 s22, s{81 + 2*(r&1)}")
        e.vmem(f"buffer_store_dwordx4 {vr(RO+4*buf[r],4)}, v{vGA}, s[20:23], s31 offen{g.STPOL}", ("S", r))
    def at(pos):
        for op in SC.get(pos, []):
            if op[0] == "W": e(f"s_waitcnt vmcnt({op[1:]})")
            else: (load if op[0] == "L" else store)(int(op[1]))
    nxt_setup(); ent(range(7)); e(W); dels(range(7)); e(W)
    e("s_load_dwordx8 s[72:79], s[4:5], 0")
    pro = seq[min(n for n, op in enumerate(seq) if op[0] == "L"):]
    NP = int(os.environ.get("K2NP", 3))
    def pro_ops(nl):
        n = 0
        while pro and not (pro[0][0] == "L" and n == nl):
            op = pro.pop(0); n += op[0] == "L"
            (load if op[0] == "L" else store)(int(op[1]))
    pro_ops(NP)
    stamp(e, "ld0iss")
    g.sel_consts(e, T0 + 2, T0 + 3)
    e(W)
    g.sel_wT(e, WD, 72, T0 + 2, T0 + 3, T0)
    e("s_nop 0")
    e.waitvm("m")
    MD = V
    vMax = T0 + 4
    for j in range(4): e(f"{MFMA} {vr(MD+4*j,4)}, {vr(WD,2)}, {vr(M+2*j,2)}, 0")
    e(f"s_mul_i32 s31, s{sBad}, 0x7f800000\nv_mov_b32 v{vMax}, s31")
    def md_row(j):
        for h in range(2):
            a = MD + 4*j + 2*h
            e(f"""
            v_cvt_pk_bf16_f32 v{a}, 0, v{a}
            v_cvt_pk_bf16_f32 v{a+1}, 0, v{a+1}
            v_and_b32 v{T0}, 0x7fffffff, v{a}
            v_and_b32 v{T0+1}, 0x7fffffff, v{a+1}
            v_max3_u32 v{vMax}, v{T0}, v{T0+1}, v{vMax}
            """)
    for j in range(3): md_row(j)
    duty(e, 0, sWave, "k2_md3", lambda: md_row(3))
    wave_scan(e, vMax, "v_max_u32")
    e(f"""
    s_lshl_b32 s31, s{sWave}, 2
    v_readlane_b32 s32, v{vMax}, 63
    v_mov_b32 v{T0}, s31
    v_lshrrev_b32 v{T0+2}, 2, v{vL16}
    v_mov_b32 v{T0+1}, s32
    v_and_b32 v{T0+2}, 0x3c, v{T0+2}
    ds_write_b32 v{T0}, v{T0+1} offset:{K2_WTOT}
    s_waitcnt lgkmcnt(0)
    s_barrier
    ds_read_b32 v{vMax}, v{T0+2} offset:{K2_WTOT}
    s_waitcnt lgkmcnt(0)
    """)
    row_scan(e, [vMax], ["v_max_u32"])
    e(f"""
    v_lshrrev_b32 v{T0+2}, 1, v{vA}
    v_readlane_b32 s32, v{vMax}, 15
    s_nop 0
    s_lshr_b32 s32, s32, 23
    s_sub_u32 s34, 268, s32
    s_min_u32 s34, s34, 254
    s_cmp_eq_u32 s32, 255
    s_cselect_b32 s{sBad}, 1, 0
    s_lshl_b32 s32, s34, 23
    s_mov_b32 s33, s32
    """)
    def tab_row(j):
        for h in range(2):
            a = MD + 4*j + 2*h
            e(f"v_pk_mul_f32 {vr(a,2)}, {vr(a,2)}, s[32:33]\nv_cvt_pkrtz_f16_f32 v{T0+h}, v{a}, v{a+1}")
        e(f"ds_write_b64 v{T0+2}, {vr(T0,2)} offset:{K2_TAB + j*8192}")
    for j in range(3): tab_row(j)
    duty(e, 0, sWave, "k2_tab3", lambda: tab_row(3))
    e("s_waitcnt lgkmcnt(0)\ns_barrier")
    pro_ops(99)
    e(f"v_lshlrev_b32 v{vLB}, 1, v{vGA}\nv_sub_u32 v{vLB}, v{vLB}, v{vLA}\nv_add_u32 v{vLB}, {H2 + 2*K2_BUF}, v{vLB}")
    stamp(e, "tab")
    def gather(r):
        for h in range(2):
            d = RAW + 4*r + 2*h; i = 2*r + h
            e(f"""
            v_lshrrev_b32 v{TA+h}, 17, v{d}
            v_and_b32 v{TA+h}, 0x7ff8, v{TA+h}
            ds_read_b64 {vr(V+2*i,2)}, v{TA+h} offset:{K2_TAB}
            """)
    def rank(r):
        for h in range(2):
            d = RAW + 4*r + 2*h; i = 2*r + h
            e(f"""
            v_lshrrev_b32 v{CA+i}, 4, v{d}
            v_and_b32 v{CA+i}, 0x3fc, v{CA+i}
            ds_add_rtn_u32 v{RK+i}, v{CA+i}, v{vEight} offset:{K2_CNT}
            """)
    def value(r):
        for h in range(2):
            d = RAW + 4*r + 2*h; i = 2*r + h; c = RAW + 4*r + 1
            sel = f"op_sel:[0,{h}] op_sel_hi:[1,{h}]"
            e(f"""
            v_lshl_add_u32 v{TA}, v{d}, 2, s{sBias}
            v_pk_mul_f16 v{V+2*i}, v{V+2*i}, v{c} {sel}
            v_pk_mul_f16 v{V+2*i+1}, v{V+2*i+1}, v{c} {sel}
            v_bfi_b32 v{d}, 63, v{d}, v{TA}
            v_add_u32 v{V+2*i}, 0x40004, v{V+2*i}
            v_add_u32 v{V+2*i+1}, 0x40004, v{V+2*i+1}
            v_lshrrev_b32 v{TA}, 3, v{d}
            v_bfi_b32 v{V+2*i}, s{sMsk}, v{d}, v{V+2*i}
            v_bfi_b32 v{V+2*i+1}, s{sMsk}, v{TA}, v{V+2*i+1}
            """)
    def mask(r): e(f"s_mov_b64 exec, {sr(MK+2*r,2)}")
    FULL = "s_mov_b64 exec, -1"
    g.lstamp_begin(e)
    vm_top = list(e.vm)
    e("k2_loop:")
    for r in st_order[:4]: ro_read(r)
    for r in range(7): e(f"s_mov_b64 {sr(MK+2*r,2)}, {sr(MKN+2*r,2)}")
    for r in (0, 1, 2):
        e.waitvm(("L", r)); mask(r); gather(r); rank(r)
    e(FULL)
    nxt_setup()
    e(W)
    at("F")
    for r in (0, 1, 2): value(r)
    ent((0, 1, 2))
    at("P")
    for r in st_order[4:]: ro_read(r)
    for r in (3, 4, 5, 6):
        e.waitvm(("L", r)); mask(r); rank(r)
    e(FULL)
    e(W)
    dels((0, 1, 2))
    at("B")
    g.lstamp(e, "p1e", sJ, 0)
    e("s_barrier")
    g.lstamp(e, "b1", sJ, 0)
    c = T0; cp = T0 + 4; sc = T0 + 8; tt = T0 + 9; b = RO + 12
    e(f"ds_read_b128 {vr(c,4)}, v{vL16} offset:{K2_CNT}")
    for r in (3, 4, 5, 6): gather(r)
    e("s_waitcnt lgkmcnt(8)")
    at("C")
    for i in range(4): e(f"v_sub_u32 v{c+i}, v{c+i}, v{CP+i}")
    for i in range(4): e(f"v_and_b32 v{cp+i}, 8, v{c+i}")
    for i in range(4): e(f"v_add_u32 v{cp+i}, v{cp+i}, v{c+i}")
    e(f"v_add_u32 v{tt}, v{cp}, v{cp+1}\nv_add3_u32 v{tt}, v{tt}, v{cp+2}, v{cp+3}\nv_mov_b32 v{sc}, v{tt}")
    g.half_scan(e, sc)
    e(f"""
    v_sub_u32 v{b}, v{sc}, v{tt}
    v_readlane_b32 s33, v{sc}, 31
    v_readlane_b32 s26, v{sc}, 63
    v_add_u32 v{b}, v{b}, v{vHalf}
    v_add_u32 v{b+1}, v{b}, v{cp}
    v_add_u32 v{b+2}, v{b+1}, v{cp+1}
    v_add_u32 v{b+3}, v{b+2}, v{cp+2}
    """)
    for i in range(4): e(f"v_sub_u32 v{b+i}, v{b+i}, v{CP+i}")
    e(W)
    e(f"ds_write_b128 v{vL16}, {vr(b,4)} offset:{K2_BASE}")
    for r in range(7):
        mask(r)
        for h in range(2): e(f"ds_read_b32 v{CA+2*r+h}, v{CA+2*r+h} offset:{K2_BASE}")
    e(FULL)
    at("G")
    for r in (3, 4, 5): value(r)
    e(f"s_cmp_eq_u64 {sr(MK+12,2)}, 0\ns_cbranch_scc1 k2_r6")
    value(6)
    e("k2_r6:")
    ent((3, 4, 5, 6))
    e(f"s_cmp_lt_u32 s{sWave}, 14\ns_cbranch_scc1 k2_dutyB")
    for i in range(4): e(f"v_add_u32 v{b+i}, v{b+i}, v{CP+i}")
    def dA():
        e(f"""
        s_mul_i32 s31, s{sJ}, 6
        s_lshr_b32 s31, s34, s31
        s_lshl_b32 s31, s31, 26
        s_lshl_b32 s32, s{sJ}, 10
        v_add_u32 v{tt}, s32, v{vL16}
        """)
        for i in range(4):
            e(f"v_sub_u32 v{b+i}, v{b+i}, v{vHalf}\nv_lshrrev_b32 v{b+i}, 4, v{b+i}\nv_lshl_or_b32 v{b+i}, v{cp+i}, 9, v{b+i}\nv_or_b32 v{b+i}, s31, v{b+i}")
        e(f"ds_write_b128 v{tt}, {vr(b,4)} offset:{K2_DIRB}")
    duty(e, 15, sWave, "k2_dutyA", dA)
    def dB():
        e(f"""
        s_lshr_b32 s31, s2, 4
        s_lshl_b32 s32, s{sJ}, 4
        s_add_u32 s31, s31, s32
        s_bfe_u32 s32, s31, 0x30003
        s_and_b32 s31, s31, 7
        v_mov_b32 v{sc}, s31
        v_mov_b32 v{tt}, s32
        """)
        for i in range(4):
            e(f"""
            v_add_u32 v{b+i}, v{b+i}, v{c+i}
            v_cmpx_ne_u32 vcc, v{cp+i}, v{c+i}
            ds_write_b64 v{b+i}, {vr(sc,2)} offset:{K2_BUF}
            s_mov_b64 exec, -1
            """)
    duty(e, 14, sWave, "k2_dutyB", dB)
    for i in range(4): e(f"v_add_u32 v{CP+i}, v{CP+i}, v{c+i}")
    e(W)
    dels((3, 4, 5, 6))
    def scat(r):
        mask(r)
        for h in range(2):
            i = 2*r + h
            e(f"v_add_u32 v{RK+i}, v{RK+i}, v{CA+i}\nds_write_b64 v{RK+i}, {vr(V+2*i,2)} offset:{K2_BUF}")
    scat(0); scat(1)
    e(FULL); at("H"); e(W)
    scat(2); scat(3)
    e(FULL); at("D")
    scat(4); scat(5); scat(6)
    e(FULL); at("E")
    e(f"""
    s_max_u32 s31, s33, s26
    s_cmp_gt_u32 s31, {H2}
    s_cselect_b32 s{sBad}, 1, s{sBad}
    s_cmp_eq_u32 s{sHalf}, 0
    s_cselect_b32 s81, s33, s26
    s_cselect_b32 s83, s26, s33
    """)
    g.img_base_s(e, 80, sI, sHalf, 18, g.IMG2, g.PG2)
    e("s_xor_b32 s82, s80, 0x2000")
    for q in (81, 83):
        e(f"""
        s_min_u32 s{q}, s{q}, {H2}
        s_add_u32 s{q}, s{q}, 127
        s_and_b32 s{q}, s{q}, 0xffffff80
        s_and_b32 s31, s{q}, 0xffffe000
        s_add_u32 s{q}, s{q}, s31
        s_add_u32 s{q}, s{q}, s{q-1}
        """)
    e(f"""
    s_add_u32 s{sI}, s{sI}, 1
    s_add_u32 s{sJ}, s{sJ}, 1
    s_waitcnt lgkmcnt(0)
    s_barrier
    """)
    g.lstamp(e, "b2", sJ, 0)
    def from_first_load(v):
        i = [n for n, t in enumerate(v) if t[0] == "L"]
        return v[i[0]:] if i else []
    assert from_first_load(e.vm) == from_first_load(vm_top), (e.vm, vm_top)
    e(f"s_cmp_lt_u32 s{sJ}, 4\ns_cbranch_scc1 k2_loop")
    g.lstamp_end(e, 4)
    R = V
    for r in range(7): e(f"ds_read_b128 {vr(R+4*r,4)}, v{vLB if r & 1 else vLA} offset:{r*8192}")
    for r in range(7):
        e(f"s_add_u32 s31, s{80 + 2*(r&1)}, {r*16384}\ns_mov_b32 s22, s{81 + 2*(r&1)}\ns_waitcnt lgkmcnt({6-r})")
        e(f"buffer_store_dwordx4 {vr(R+4*r,4)}, v{vGA}, s[20:23], s31 offen{g.STPOL}")
    e(f"""
    s_cmp_lt_u32 s{sWave}, 12
    s_cbranch_scc1 k2_fin
    v_lshrrev_b32 v{T0+4}, 2, v{vGA}
    v_and_b32 v{T0+4}, 0x3fc, v{T0+4}
    """)
    for k in range(4): e(f"ds_read_b32 v{T0+k}, v{T0+4} offset:{K2_DIRB + k*1024}")
    e(f"""
    v_and_b32 v{T0+5}, 0xff0, v{vGA}
    s_lshl_b32 s31, s2, 12
    s_add_u32 s31, s31, {g.DIR2}
    s_sub_u32 s32, s{sBad}, 1
    s_waitcnt lgkmcnt(0)
    """)
    for k in range(4): e(f"v_and_b32 v{T0+k}, s32, v{T0+k}")
    e(f"""
    buffer_store_dwordx4 {vr(T0,4)}, v{T0+5}, s[8:11], s31 offen{g.STPOL}
    k2_fin:
    """)
    stamp_out(e, 1)
    e("k2_done:\ns_endpgm")
    return e.text(), NV, 96 if CPF else 84
```

```python
from asmlib import *
G3 = int(os.environ.get("G3", 3))
CAP3 = 40
K3_WTOT = 0; K3_FLAG = 256; K3_DEL = 272
DELW3 = 1024
K3_MAP = K3_DEL + 16 * DELW3 + 16
NENT3 = CAP3 + 3 * G3
MAPW3 = NENT3 * 16
K3_ACC = K3_MAP + 16 * MAPW3
AST = 25600
K3_F64 = 512
K3_LDS = max(K3_ACC + 2 * AST, K3_F64 + 4 * 25600)
FB = 7
CHK = 8
MAGIC = 0x20400000
PRIO = os.environ.get('PRIO', '')

def gen_k3(g):
    MFMA, duty, W = g.MFMA, g.duty, g.W
    e = Asm()
    e.raw(kstart("k3_kernel"))
    vA, vL16, vMsk, vBase, vLane, vEnt, vQ, vRow = 1, 2, 3, 4, 5, 6, 7, 8
    T0 = 10
    X = 26
    EN = X + 4 * G3
    P = (EN + 4 * G3, EN + 8 * G3)
    DI = EN + 12 * G3
    M = DI + 4
    SR = M + 8
    WU = SR + 32
    NV = WU + 2
    assert NV <= 126 and NENT3 <= 64, NV
    WS_, WR_ = T0 + 8, T0 + 12
    sWave, sB, sU, sMapW, sEmin, sRem, sW0, sW1, sRow, sMagic = 3, 35, 36, 38, 40, 41, 43, 44, 45, 42
    sCen, sT = 48, 52
    e("s_cmpk_ge_u32 s2, 256\ns_cbranch_scc1 k3_done")
    stamp(e, "start")
    e(f"""
    s_load_dwordx2 s[8:9], s[0:1], 104
    s_load_dwordx2 s[12:13], s[0:1], 0
    s_load_dwordx2 s[20:21], s[0:1], 24
    s_load_dwordx2 s[24:25], s[0:1], 88
    s_load_dwordx2 s[4:5], s[0:1], 40
    s_load_dwordx4 s[52:55], s[0:1], 56
    s_load_dwordx2 s[56:57], s[0:1], 80
    v_readfirstlane_b32 s3, v0
    """)
    g.bucket_id(e, sB)
    vE, vDl, vSc, vBs, vDA, vK = T0 + 4, T0 + 8, T0 + 9, T0 + 10, T0 + 12, T0 + 13
    e("s_lshr_b32 s3, s3, 6")
    g.seg_ids(e, vBs, vK, vE, T0, sWave)
    e(f"""
    v_lshlrev_b32 v{vA}, 4, v0
    s_mov_b32 s10, {g.WSUSE}
    s_mov_b32 s11, 0x00020000
    v_and_b32 v{vL16}, 0x3f0, v{vA}
    s_waitcnt lgkmcnt(0)
    """)
    g.ws_align(e, 8)
    g.bucket_flip(e, sB, 8, T0, vL16)
    e(f"s_lshl_b32 s32, s{sB}, 4\ns_add_u32 s32, s32, {g.DIR2}")
    e.vmem(f"buffer_load_dword v{vE}, v{vE}, s[8:11], s32 offen", "dir")
    code_prefetch(e, "k3", 9, "k3_fallback")
    e(f"v_lshl_add_u32 v{vK}, v{vBs}, 2, v{vK}")
    g.img_base_v(e, vBs, vK, T0, sB, 18, g.IMG2, g.PG2)
    e(f"""
    v_mov_b32 v{vMsk}, 0x00070007
    v_mov_b32 v{vBase}, {K3_ACC}
    v_lshrrev_b32 v{vRow}, 1, v{vL16}
    v_lshrrev_b32 v{T0+11}, 3, v{vL16}
    v_lshrrev_b32 v{vLane}, 4, v{vL16}
    s_mov_b32 s{sW0}, {8 | (512 << 16)}
    s_mov_b32 s{sW1}, {64 | (4096 << 16)}
    s_mov_b32 s{sMagic}, {MAGIC}
    s_mov_b32 s14, {E*8}
    s_mov_b32 s15, 0x00020000
    s_mov_b32 s22, {E*2}
    s_mov_b32 s23, 0x00020000
    s_mov_b32 s26, {E*8}
    s_mov_b32 s27, 0x00020000
    s_lshl_b32 s{sRow}, s{sWave}, 17
    s_lshl_b32 s32, s{sB}, 9
    s_add_u32 s{sRow}, s{sRow}, s32
    s_mul_i32 s{sMapW}, s{sWave}, {MAPW3}
    s_lshl_b32 s39, s{sWave}, 6
    """)
    for i in range(6): e(f"v_mov_b32 v{X+i}, 0")
    zb = 2 * AST
    e(f"""
    v_mov_b32 v{X+6}, 1024
    v_mov_b32 v{X+8}, 0
    v_bfrev_b32 v{X+10}, 1
    v_add_u32 v{T0}, s{sMapW}, v{vL16}
    ds_write_b128 v{vA}, {vr(X+8,4)} offset:{K3_DEL}
    ds_write_b128 v{X}, {vr(X+8,4)} offset:{K3_DEL + 16*DELW3}
    v_cmpx_gt_u32 vcc, {NENT3}, v{vLane}
    ds_write_b128 v{T0}, {vr(X+4,4)} offset:{K3_MAP}
    s_mov_b64 exec, -1
    v_add_u32 v{T0}, 0x8000, v{vA}
    """)
    for r in range(3):
        e(f"ds_write_b128 v{vA if r < 2 else T0}, {vr(X,4)} offset:{K3_ACC + (r if r < 2 else r-2)*16384}")
    e(f"""
    ds_write_b32 v{X}, v{X} offset:{K3_FLAG}
    v_cmpx_gt_u32 vcc, {(zb - 3*16384)//16}, v0
    ds_write_b128 v{T0}, {vr(X,4)} offset:{K3_ACC + 16384}
    s_mov_b64 exec, -1
    s_lshr_b32 s31, s{sRow}, 2
    """)
    vN, vF, vRk = T0 + 5, T0 + 6, T0 + 7
    e.waitvm("dir")
    stamp(e, "dir")
    for j in range(4):
        e.vmem(f"buffer_load_ushort v{DI+j}, v{T0+11}, s[20:23], s31 offen", "dist")
        if j < 3: e(f"s_add_u32 s31, s31, {16<<15}")
    def m_loads():
        e(f"s_mov_b32 s31, s{sRow}")
        for j in range(4):
            e.vmem(f"buffer_load_dwordx2 {vr(M+2*j,2)}, v{vRow}, s[12:15], s31 offen", "m")
            if j < 3: e(f"s_add_u32 s31, s31, {16<<17}")
    if "mlate" not in EXP: m_loads()
    e(f"v_bfe_u32 v{vN}, v{vE}, 13, 13\nv_lshrrev_b32 v{T0}, 26, v{vE}")
    e(f"""
    s_nop 1
    v_mov_b32_dpp v{T0+3}, v{T0} quad_perm:[1,1,1,1] row_mask:0xf bank_mask:0xf
    v_mov_b32_dpp v{T0+2}, v{T0} quad_perm:[0,0,0,0] row_mask:0xf bank_mask:0xf
    """)
    g.wmap_scan(e, vN, vF, vRk, sU)
    e(f"""
    v_and_b32 v{vE}, 0x1fff, v{vE}
    v_add_u32 v{vRk}, s39, v{vRk}
    v_lshl_or_b32 v{vSc}, v{T0+3}, 6, v{T0+2}
    v_lshlrev_b32 v{vDA}, 4, v{vRk}
    s_cmp_gt_u32 s{sU}, {CAP3*64}
    s_cselect_b32 s37, 0, -1
    s_cselect_b32 s{sU}, 0, s{sU}
    s_cbranch_scc1 k3_nomap
    v_sub_u32 v{vE}, v{vE}, v{vF}
    v_lshlrev_b32 v{vDl}, 4, v{vE}
    v_cmpx_lt_u32 vcc, 0, v{vN}
    ds_write_b128 v{vDA}, {vr(vDl,4)} offset:{K3_DEL}
    """)
    g.wmap_marks(e, "k3", vN, vF, vRk, T0, sMapW, K3_MAP)
    e(f"""
    k3_nomap:
    v_mov_b32 v{vEnt}, s{sMapW}
    v_mov_b32 v{vQ}, v{vL16}
    s_mov_b32 s{sRem}, s{sU}
    """)
    stamp(e, "map")
    def ent_reads():
        for i in range(G3): e(f"ds_read_b128 {vr(EN+4*i,4)}, v{vEnt} offset:{K3_MAP + i*16}")
        e(f"v_add_u32 v{vEnt}, {G3*16}, v{vEnt}")
    def ranks():
        for i in range(G3):
            e(f"""
            v_mbcnt_lo_u32_b32 v{EN+4*i+2}, v{EN+4*i}, v{EN+4*i+2}
            v_mbcnt_hi_u32_b32 v{EN+4*i+2}, v{EN+4*i+1}, v{EN+4*i+2}
            v_lshlrev_b32 v{EN+4*i+2}, 4, v{EN+4*i+2}
            """)
    def del_reads(s):
        for i in range(G3): e(f"ds_read_b128 {vr(P[s]+4*i,4)}, v{EN+4*i+2} offset:{K3_DEL}")
    def load(s, i):
        p = P[s] + 4*i
        return (f"v_add_u32 v{p}, v{p}, v{vQ}\nv_add_u32 v{vQ}, 0x400, v{vQ}\nv_and_b32 v{p+3}, 0xffffe000, v{p}\n"
                f"v_add3_u32 v{p}, v{p}, v{p+3}, v{p+2}\n"
                f"buffer_load_dwordx4 {vr(X+4*i,4)}, v{p}, s[8:11], 0 offen{g.RDPOL}")
    ent_reads(); e(W); ranks(); del_reads(0); ent_reads(); e(W)
    for i in range(G3): e.vmem(load(0, i), "x")
    stamp(e, "ld0iss")
    if "mlate" in EXP: m_loads()
    e(f"""
    s_load_dwordx4 {sr(sCen,4)}, s[4:5], 0
    s_load_dwordx16 s[60:75], s[52:53], 0
    s_load_dwordx16 s[76:91], s[54:55], 0
    s_load_dwordx8 s[92:99], s[56:57], 0
    """)
    e(f"v_and_b32 v{T0}, s37, v{vSc}")
    wave_scan(e, T0, "v_min_u32")
    e(f"""
    s_lshl_b32 s31, s{sWave}, 4
    v_readlane_b32 s32, v{T0}, 63
    v_mov_b32 v{T0+1}, s31
    v_and_b32 v{T0+2}, 0xf0, v{vL16}
    v_mov_b32 v{T0}, s32
    ds_write_b32 v{T0+1}, v{T0} offset:{K3_WTOT}
    s_waitcnt lgkmcnt(0)
    s_barrier
    ds_read_b32 v{T0}, v{T0+2} offset:{K3_WTOT}
    """)
    ranks()
    e(W)
    row_scan(e, [T0], ["v_min_u32"])
    e(f"""
    s_nop 0
    v_readlane_b32 s{sEmin}, v{T0}, 15
    s_nop 0
    s_add_u32 s31, s{sEmin}, {127 + FB - 86}
    s_cmp_eq_u32 s{sEmin}, 0
    s_cselect_b32 s{sRem}, 0, s{sRem}
    """)
    for v in [vSc] + [P[0] + 4*i + 1 for i in range(G3)]:
        e(f"v_sub_u32 v{v}, s31, v{v}\nv_max_i32 v{v}, 0, v{v}\nv_lshlrev_b32 v{v}, 23, v{v}")
    e(f"""
    v_cmpx_lt_u32 vcc, 0, v{vN}
    ds_write_b32 v{vDA}, v{vSc} offset:{K3_DEL + 4}
    s_mov_b64 exec, -1
    """)
    del_reads(1)
    unpack_s(e, sT, sCen, 8)
    g.sel_consts(e, T0 + 2, T0 + 3)
    g.sel_wT(e, WR_, 60, T0 + 2, T0 + 3, T0); g.sel_wT(e, WR_ + 2, 68, T0 + 2, T0 + 3, T0)
    g.sel_wT(e, WS_, 76, T0 + 2, T0 + 3, T0); g.sel_wT(e, WS_ + 2, 84, T0 + 2, T0 + 3, T0)
    g.sel_wT(e, WU, 92, T0 + 2, T0 + 3, T0)
    e.waitvm("dist")
    stamp(e, "dist")
    def rnd(a): e(f"v_cvt_pk_bf16_f32 v{a}, 0, v{a}")
    def rbf_row(j):
        t = T0
        e(f"v_lshlrev_b32 v{DI+j}, 16, v{DI+j}")
        for r in range(8): e(f"v_subrev_f32 v{t+r}, s{sT+r}, v{DI+j}")
        for r in range(8): rnd(t + r)
        for r in range(8): e(f"v_mul_f32 v{t+r}, v{t+r}, v{t+r}")
        for r in range(8): rnd(t + r)
        for r in range(8): e(f"v_mul_f32 v{t+r}, 0xc1200000, v{t+r}")
        for r in range(8): rnd(t + r)
        for r in range(8): e(f"v_mul_f32 v{t+r}, 0x3fb8aa3b, v{t+r}")
        for r in range(8): e(f"v_exp_f32 v{t+r}, v{t+r}")
        for p in range(4): e(f"v_cvt_pk_bf16_f32 v{t+p}, v{t+2*p}, v{t+2*p+1}")
        S = SR + 8*j
        e(f"""
        s_nop 0
        {MFMA} {vr(S,4)}, {vr(WS_,2)}, {vr(t,2)}, 0
        {MFMA} {vr(S+4,4)}, {vr(WR_,2)}, {vr(t,2)}, 0
        s_nop 0
        {MFMA} {vr(S,4)}, {vr(WS_+2,2)}, {vr(t+2,2)}, {vr(S,4)}
        {MFMA} {vr(S+4,4)}, {vr(WR_+2,2)}, {vr(t+2,2)}, {vr(S+4,4)}
        """)
    for j in range(3): rbf_row(j)
    duty(e, 0, sWave, "k3_rbf3", lambda: rbf_row(3))
    stamp(e, "rbf")
    if "nold" in EXP: e("s_waitcnt vmcnt(0)")
    e("k3_loop:")
    for s in range(2):
        for i in range(G3):
            lab = f"{s}_{i}"
            e(f"""
            s_cmp_lt_i32 s{sRem}, 64
            s_cbranch_scc1 k3_part{lab}
            k3_back{lab}:
            """)
            if s == 0:
                pass
            e(f"s_waitcnt vmcnt({G3-1})")
            for h in range(2):
                d = X + 4*i + 2*h; a = T0 + 8 + h; t = T0 + 4*h; x = T0 + 10 + 2*h; f = P[s] + 4*i + 1
                e(f"""
                v_and_b32 v{x}, v{vMsk}, v{d}
                v_and_b32 v{x+1}, v{vMsk}, v{d+1}
                v_dot2_u32_u16 v{a}, v{x}, s{sW0}, v{vBase}
                v_dot2_u32_u16 v{a}, v{x+1}, s{sW1}, v{a}
                v_xor_b32 v{x}, v{x}, v{d}
                v_xor_b32 v{x+1}, v{x+1}, v{d+1}
                v_fma_mix_f32 v{t+2}, v{x+1}, v{f}, s{sMagic} op_sel:[0,0,0] op_sel_hi:[1,0,0]
                v_fma_mix_f32 v{t+3}, v{x+1}, v{f}, s{sMagic} op_sel:[1,0,0] op_sel_hi:[1,0,0]
                v_fma_mix_f32 v{t}, v{x}, v{f}, s{sMagic} op_sel:[0,0,0] op_sel_hi:[1,0,0]
                v_fma_mix_f32 v{t+1}, v{x}, v{f}, s{sMagic} op_sel:[1,0,0] op_sel_hi:[1,0,0]
                v_lshl_or_b32 v{t+2}, v{t+3}, 29, v{t+2}
                v_lshrrev_b32 v{t+3}, 3, v{t+3}
                """)
            if i == 0: e(W)
            if "nold" not in EXP: e(load(1 - s, i))
            if i == 0: ent_reads()
            if i == G3 - 1:
                e(W); ranks(); del_reads(s)
            for h in range(2):
                if "noat" in EXP: continue
                for q in range(2): e(f"ds_add_u64 v{T0+8+h}, {vr(T0+4*h+2*q,2)} offset:{q*AST}")
            e(f"s_sub_i32 s{sRem}, s{sRem}, 64")
    e("s_branch k3_loop")
    for s in range(2):
        for i in range(G3):
            lab = f"{s}_{i}"
            e(f"""
            k3_part{lab}:
            s_cmp_lt_i32 s{sRem}, 1
            s_cbranch_scc1 k3_loopdone
            s_bfm_b64 exec, s{sRem}, 0
            s_branch k3_back{lab}
            """)
    e(f"""
    k3_loopdone:
    s_mov_b64 exec, -1
    s_waitcnt vmcnt(0) lgkmcnt(0)
    """)
    stamp(e, "loopend")
    e("s_barrier")
    stamp(e, "bar")
    e(f"s_cmp_eq_u32 s{sEmin}, 0\ns_cbranch_scc1 k3_fallback")
    e.vm = []
    def finish_rows(rows, Aof):
        U = {j: T0 + 4*n for n, j in enumerate(rows)}
        for j in rows:
            A = Aof(j); S = SR + 8*j
            for q in range(4): e(f"v_mul_f32 v{A+q}, v{A+q}, v{S+q}")
            e(f"v_cvt_pk_bf16_f32 v{A}, v{A}, v{A+1}\nv_cvt_pk_bf16_f32 v{A+1}, v{A+2}, v{A+3}")
        e("s_nop 1")
        for j in rows: e(f"{MFMA} {vr(U[j],4)}, {vr(WU,2)}, {vr(Aof(j),2)}, 0")
        for j in rows:
            A = Aof(j); R = SR + 8*j + 4
            e(f"""
            v_lshlrev_b32 v{A}, 16, v{M+2*j}
            v_and_b32 v{A+1}, 0xffff0000, v{M+2*j}
            v_lshlrev_b32 v{A+2}, 16, v{M+2*j+1}
            v_and_b32 v{A+3}, 0xffff0000, v{M+2*j+1}
            """)
            for q in range(4): rnd(R + q)
        for j in rows:
            A = Aof(j); R = SR + 8*j + 4; u = U[j]
            for q in range(4): rnd(u + q)
            for q in range(4): e(f"v_mul_f32 v{u+q}, v{u+q}, v{R+q}")
            for q in range(4): rnd(u + q)
            for q in range(4): e(f"v_add_f32 v{A+q}, v{A+q}, v{u+q}")
            e(f"""
            v_cvt_pk_bf16_f32 v{A}, v{A}, v{A+1}
            v_cvt_pk_bf16_f32 v{A+1}, v{A+2}, v{A+3}
            s_add_u32 s31, s{sRow}, {j*(16<<17)}
            buffer_store_dwordx2 {vr(A,2)}, v{vRow}, s[24:27], s31 offen
            """)
    vAd = vEnt; vCnt = vQ
    e(f"""
    v_lshl_add_u32 v{vAd}, v0, 3, v{vBase}
    s_sub_i32 s30, {127 - FB}, s{sEmin}
    s_mov_b64 s[46:47], 0
    v_mov_b32 v{vCnt}, 0
    v_mov_b32 v{vMsk}, 0x1fffffff
    """)
    Afast = lambda j: X + 4*j
    def read_row(j):
        for q in range(2): e(f"ds_read_b64 {vr(X+4*j+2*q,2)}, v{vAd} offset:{q*AST + j*8192 + 512}")
    def fast_row(j):
        A = X + 4*j; n = T0; t = T0 + 1
        e(f"""
        v_lshrrev_b32 v{n}, 26, v{A+3}
        v_alignbit_b32 v{A+3}, v{A+3}, v{A+2}, 29
        v_lshrrev_b32 v{t}, 3, v{n}
        v_add_u32 v{vCnt}, v{vCnt}, v{n}
        v_sub_u32 v{A+1}, v{A+1}, v{t}
        v_sub_u32 v{A+3}, v{A+3}, v{n}
        v_lshlrev_b32 v{t}, 22, v{n}
        """)
        for q in range(4): e(f"v_and_b32 v{A+q}, v{vMsk}, v{A+q}")
        for q in range(4): e(f"v_sub_u32 v{A+q}, v{A+q}, v{t}")
        for q in range(4): e(f"v_cvt_f32_i32 v{A+q}, v{A+q}")
        e(f"""
        v_cvt_f32_u32 v{n}, v{n}
        v_max3_f32 v{t}, |v{A}|, |v{A+1}|, |v{A+2}|
        v_max_f32 v{t}, |v{A+3}|, v{t}
        v_mul_f32 v{n}, {hex((127 + CHK) << 23)}, v{n}
        v_cmp_lt_f32 vcc, v{t}, v{n}
        s_or_b64 s[46:47], s[46:47], vcc
        """)
        for q in range(4): e(f"v_ldexp_f32 v{A+q}, v{A+q}, s30")
    for j in range(3): read_row(j)
    def dummy():
        e(f"""
        v_add_u32 v{T0}, v{vBase}, v{vRow}
        ds_read_b32 v{vCnt}, v{T0} offset:{AST + 4}
        s_waitcnt lgkmcnt(0)
        v_lshrrev_b32 v{vCnt}, 26, v{vCnt}
        """)
    duty(e, 1, sWave, "k3_dummy", dummy)
    for j in range(3):
        e(f"s_waitcnt lgkmcnt({2*(2-j)})"); fast_row(j)
    finish_rows([0, 1, 2], Afast)
    def last():
        read_row(3); e(W); fast_row(3); finish_rows([3], Afast)
    duty(e, 0, sWave, "k3_epi3", last)
    wave_scan(e, vCnt)
    e(f"""
    s_cmp_eq_u64 s[46:47], 0
    s_cselect_b32 s31, 0, 0x1000000
    s_lshl_b32 s32, s{sU}, 1
    s_sub_u32 s31, s31, s32
    v_mov_b32 v{T0}, 0
    v_add_u32 v{vCnt}, s31, v{vCnt}
    s_bfm_b64 exec, 1, 63
    ds_add_u32 v{T0}, v{vCnt} offset:{K3_FLAG}
    s_mov_b64 exec, -1
    """)
    stamp(e, "epi")
    stamp_out(e, 2)
    e(f"""
    s_waitcnt lgkmcnt(0)
    s_barrier
    ds_read_b32 v{T0}, v{T0} offset:{K3_FLAG}
    s_waitcnt lgkmcnt(0)
    v_readfirstlane_b32 s31, v{T0}
    s_nop 0
    s_cmp_eq_u32 s31, 0
    s_cbranch_scc1 k3_done
    """)
    if "noat" in EXP or "nold" in EXP: e("s_branch k3_done")
    sWd = 72
    e(f"""
    k3_fallback:
    s_load_dwordx2 s[8:9], s[0:1], 8
    s_load_dwordx2 s[16:17], s[0:1], 16
    s_load_dwordx2 s[20:21], s[0:1], 32
    s_load_dwordx2 s[4:5], s[0:1], 48
    s_load_dwordx2 s[6:7], s[0:1], 72
    s_waitcnt vmcnt(0) lgkmcnt(0)
    s_load_dword s33, s[4:5], 0
    s_load_dwordx8 s[52:59], s[6:7], 0
    s_mov_b32 s10, {T*4}
    s_mov_b32 s11, 0x00020000
    s_mov_b32 s18, {T*4}
    s_mov_b32 s19, 0x00020000
    s_mov_b32 s22, {T*2}
    s_mov_b32 s23, 0x00020000
    """)
    for i in range(4): e(f"v_mov_b32 v{X+i}, 0")
    e(f"v_add_u32 v{T0}, 0xc000, v{vA}")
    for r in range(3): e(f"ds_write_b128 v{vA}, {vr(X,4)} offset:{K3_F64 + r*16384}")
    for r in range(3): e(f"ds_write_b128 v{T0}, {vr(X,4)} offset:{K3_F64 + r*16384}")
    e(f"""
    v_cmpx_gt_u32 vcc, 256, v0
    ds_write_b128 v{T0}, {vr(X,4)} offset:{K3_F64 + 3*16384}
    s_mov_b64 exec, -1
    s_waitcnt lgkmcnt(0)
    s_barrier
    s_lshl_b32 s33, s33, 16
    """)
    unpack_s(e, sWd, 52, 16)
    e(f"""
    s_mov_b32 s30, 0
    v_lshrrev_b32 v{vQ}, 1, v{vA}
    k3_fbloop:
    buffer_load_dwordx4 {vr(X,4)}, v{vA}, s[16:19], s30 offen
    s_lshr_b32 s29, s30, 1
    s_waitcnt vmcnt(0)
    """)
    for q in range(4):
        x = T0; y = T0 + 4; z = T0 + 8
        e(f"""
        v_bfe_u32 v{x}, v{X+q}, 6, 8
        v_cmpx_eq_u32 vcc, s{sB}, v{x}
        s_cbranch_execz k3_fbskip{q}
        buffer_load_dword v{x}, v{vA}, s[8:11], s30 offen offset:{4*q}
        buffer_load_ushort v{EN}, v{vQ}, s[20:23], s29 offen offset:{2*q}
        s_waitcnt vmcnt(1)
        v_lshlrev_b32 v{x}, 3, v{x}
        buffer_load_dwordx2 {vr(y,2)}, v{x}, s[12:15], 0 offen
        s_waitcnt vmcnt(1)
        v_lshlrev_b32 v{EN}, 16, v{EN}
        v_mul_f32 v{EN}, s33, v{EN}
        v_cvt_pk_bf16_f32 v{EN}, 0, v{EN}
        v_mul_f32 v{EN}, 0.15915494, v{EN}
        v_fract_f32 v{EN}, v{EN}
        v_cos_f32 v{EN}, v{EN}
        v_lshrrev_b32 v{EN+1}, 8, v{X+q}
        v_cvt_pk_bf16_f32 v{EN}, 0, v{EN}
        v_bfi_b32 v{EN+1}, 63, v{X+q}, v{EN+1}
        v_lshlrev_b32 v{EN+1}, 3, v{EN+1}
        v_add_u32 v{EN+2}, {2*25600}, v{EN+1}
        s_waitcnt vmcnt(0)
        v_lshlrev_b32 v{x}, 16, v{y}
        v_and_b32 v{x+1}, 0xffff0000, v{y}
        v_lshlrev_b32 v{x+2}, 16, v{y+1}
        v_and_b32 v{x+3}, 0xffff0000, v{y+1}
        """)
        for h in range(2):
            d = vr(y + 2*h, 2)
            e(f"v_pk_mul_f32 {d}, {vr(x,2)}, {sr(sWd+2*h,2)} op_sel:[0,0] op_sel_hi:[0,1]")
            e(f"v_pk_fma_f32 {d}, {vr(x,2)}, {sr(sWd+4+2*h,2)}, {d} op_sel:[1,0,0] op_sel_hi:[1,1,1]")
            e(f"v_pk_fma_f32 {d}, {vr(x+2,2)}, {sr(sWd+8+2*h,2)}, {d} op_sel:[0,0,0] op_sel_hi:[0,1,1]")
            e(f"v_pk_fma_f32 {d}, {vr(x+2,2)}, {sr(sWd+12+2*h,2)}, {d} op_sel:[1,0,0] op_sel_hi:[1,1,1]")
        for c in range(4): rnd(y + c)
        for c in range(4):
            e(f"v_mul_f32 v{y+c}, v{EN}, v{y+c}\nv_cvt_f64_f32 {vr(z+2*c,2)}, v{y+c}")
        for c in range(4):
            e(f"ds_add_f64 v{EN+1+c//2}, {vr(z+2*c,2)} offset:{K3_F64 + (c%2)*25600}")
        e(f"k3_fbskip{q}:\ns_mov_b64 exec, -1")
    e(f"""
    s_add_u32 s30, s30, 16384
    s_cmp_lt_u32 s30, {T*4}
    s_cbranch_scc1 k3_fbloop
    s_waitcnt lgkmcnt(0)
    s_barrier
    v_add_u32 v{vEnt}, {2*25600}, v{vQ}
    """)
    def slow_row(j):
        for c in range(4):
            e(f"ds_read_b64 {vr(EN+2*c,2)}, v{vQ if c < 2 else vEnt} offset:{K3_F64 + (c%2)*25600 + j*8192}")
        e(W)
        for c in range(4): e(f"v_cvt_f32_f64 v{X+c}, {vr(EN+2*c,2)}")
        finish_rows([j], lambda j: X)
        e("s_nop 1")
    for j in range(3): slow_row(j)
    e(f"s_cmp_lg_u32 s{sWave}, 0\ns_cbranch_scc1 k3_done")
    slow_row(3)
    e("k3_done:\ns_endpgm")
    return e.text(), NV, 100
```

```python
from asmlib import *

TPW   = 4
TILE  = 12500
NX    = 212
MAINREC = 3072 * 4096
PG    = 1 << 21
BLK1  = 8160
H1    = 5 * BLK1
IMG1  = 5 * 16384
H2    = 7 * 8192
IMG2  = 7 * 16384
PG2   = 42
REC2  = PG2 * PG
PGD   = PG2 + 57
DIR1  = PGD * PG
DIR2  = DIR1 + (1 << 20)
WSUSE = (PGD + 1) * PG
CWORD = 41 * PG
PROBE = 0x1FC000
assert WSUSE + PG <= STAMP_OFF and 25 * IMG1 <= PROBE and 18 * IMG2 <= PROBE
NPAIR = int(os.environ.get("NPAIR", 3))
PPOS = os.environ.get("PPOS", "a")
FSEL = os.environ.get("FSEL", "")
LDPOL = os.environ.get("LDPOL", " nt")
STPOL = os.environ.get("STPOL", " sc1")
RDPOL = os.environ.get("RDPOL", "")
MFMA = "v_mfma_f32_4x4x4_16b_bf16"
W = "s_waitcnt lgkmcnt(0)"

def duty(e, wave, sWave, label, body):
    e(f"s_cmp_lg_u32 s{sWave}, {wave}\ns_cbranch_scc1 {label}")
    body()
    e(f"{label}:")

def lstamp(e, name, sK, n):
    if not STAMPS: return
    e.lst.append(name)
    e(f"""
    s_memrealtime s[100:101]
    s_waitcnt lgkmcnt(0)
    s_mov_b32 m0, s97
    s_add_u32 s97, s97, 1
    v_writelane_b32 v{vS}, s100, m0
    """)
def lstamp_begin(e):
    if not STAMPS: return
    e.lst = []
    e(f"s_mov_b32 s97, {len(e.stamps)}")
def lstamp_end(e, iters):
    if not STAMPS: return
    for k in range(iters): e.stamps += [f"{n}_{k}" for n in e.lst]

def sched(spec):
    d = {}
    for part in spec.split():
        p, ops = part.split(":"); d[p] = ops.split(",")
    return d

def ws_align(e, r):
    e(f"s_sub_u32 s31, 0, s{r}\ns_and_b32 s31, s31, {PG-1}\ns_add_u32 s{r}, s{r}, s31\ns_addc_u32 s{r+1}, s{r+1}, 0")

def img_base_s(e, sD, sI, sHalf, per, img, page0):
    mul, sh = {25: (1311, 15), 18: (3641, 16)}[per]
    assert all((i * mul) >> sh == i // per for i in range(1024))
    e(f"""
    s_mul_i32 s31, s{sI}, {mul}
    s_lshr_b32 s31, s31, {sh}
    s_mul_i32 s{sD}, s{sI}, {img}
    s_xor_b32 s32, s31, s{sHalf}
    s_and_b32 s32, s32, 1
    s_lshl_b32 s32, s32, 13
    s_mul_i32 s31, s31, {PG - per*img}
    s_add_u32 s{sD}, s{sD}, s31
    s_add_u32 s{sD}, s{sD}, s32
    """)
    if page0: e(f"s_add_u32 s{sD}, s{sD}, {page0*PG}")

def img_base_v(e, vD, vI, t, sB, per, img, page0):
    mul, sh = {25: (1311, 15), 18: (3641, 16)}[per]
    e(f"""
    v_mul_u32_u24 v{t}, {mul}, v{vI}
    v_mul_u32_u24 v{vD}, {img}, v{vI}
    v_lshrrev_b32 v{t}, {sh}, v{t}
    s_lshr_b32 s31, s{sB}, 7
    v_xor_b32 v{t+1}, s31, v{t}
    v_mul_u32_u24 v{t}, {PG - per*img}, v{t}
    v_and_b32 v{t+1}, 1, v{t+1}
    v_lshl_add_u32 v{vD}, v{t+1}, 13, v{vD}
    v_add_u32 v{vD}, v{vD}, v{t}
    """)
    if page0: e(f"v_add_u32 v{vD}, {page0*PG}, v{vD}")

def half_scan(e, v):
    for sh in (1, 2, 4, 8):
        e(f"s_nop 1\nv_add_u32_dpp v{v}, v{v}, v{v} row_shr:{sh} row_mask:0xf bank_mask:0xf")
    e(f"s_nop 1\nv_add_u32_dpp v{v}, v{v}, v{v} row_bcast:15 row_mask:0xa bank_mask:0xf")

def probe_time(e, base, sOff, st, sVote):
    e(f"""
    s_add_u32 s{st+6}, s{base}, s{sOff}
    s_addc_u32 s{st+7}, s{base+1}, 0
    s_xor_b32 s{st+8}, s{st+6}, 0x2000
    s_mov_b32 s{st+9}, s{st+7}
    s_load_dword s{st+10}, {sr(st+6,2)}, 384
    s_mov_b32 s31, -1
    s_mov_b32 s32, -1
    s_waitcnt lgkmcnt(0)
    s_memtime {sr(st,2)}
    s_waitcnt lgkmcnt(0)
    """)
    for i in range(NPAIR):
        e(f"""
        s_load_dword s{st+10}, {sr(st+6,2)}, {128*i}
        s_waitcnt lgkmcnt(0)
        s_memtime {sr(st+2,2)}
        s_waitcnt lgkmcnt(0)
        s_load_dword s{st+10}, {sr(st+8,2)}, {128*i}
        s_sub_u32 s{st+4}, s{st+2}, s{st}
        s_min_u32 s31, s31, s{st+4}
        s_waitcnt lgkmcnt(0)
        s_memtime {sr(st,2)}
        s_waitcnt lgkmcnt(0)
        s_sub_u32 s{st+4}, s{st}, s{st+2}
        s_min_u32 s32, s32, s{st+4}
        """)
    if STAMPS: e(f"v_writelane_b32 v{vS}, s31, 60\nv_writelane_b32 v{vS}, s32, 61")
    e(f"""
    s_cmp_lt_u32 s32, s31
    s_cselect_b32 s{sVote}, 1, 0
    s_lshr_b32 s31, s{sOff}, 13
    s_xor_b32 s{sVote}, s{sVote}, s31
    s_lshr_b32 s31, s{sOff}, 21
    s_xor_b32 s{sVote}, s{sVote}, s31
    s_lshr_b32 s31, s2, 2
    s_xor_b32 s{sVote}, s{sVote}, s31
    s_and_b32 s{sVote}, s{sVote}, 1
    """)
    if STAMPS: e(f"v_writelane_b32 v{vS}, s{sVote}, 59")

K1_CNT = 0; K1_BASE = 1024; K1_DIRB = 2048; K1_BUF = 6144; K1_LDS = K1_BUF + 2 * H1 + 32
K1S = sched(os.environ.get("K1S", "F:L2,L3 B:L0 C:S0,S1 G:L1 D:S2,S3 E:S4"))

K1FW = os.environ.get("K1FW", "")
def gen_k1():
    e = Asm()
    e.raw(kstart("k1_kernel"))
    vA, vB, vC, vD, vL16, vSix, vFreq, vRd2, vDir = 1, 2, 3, 4, 5, 6, 7, 8, 9
    T0 = 10
    IN = 20; OUT = 34; ANG = 48
    D = 56; CA = 70; RK = 84; CS = 98
    CP = (33, 47, 55, 69)
    RO = 106
    vLA, vGA, vHalf, vLB = 8, 83, 97, 105
    sHalf, sBad, sI, sVt = 45, 46, 30, 29
    NV = 126
    sWave, sK, sX = 3, 35, 36
    sLo = (40, 41, 42, 43)
    order = "FPQRBCGDE"
    early = [op for p in "FPQRBC" for op in K1S.get(p, [])]
    assert "S0" in early and "S1" in early
    e(f"s_cmpk_ge_u32 s2, 256\ns_cbranch_scc1 k1_done")
    stamp(e, "start")
    e(f"""
    s_load_dwordx2 s[8:9], s[0:1], 8
    s_load_dwordx2 s[12:13], s[0:1], 16
    s_load_dwordx2 s[16:17], s[0:1], 32
    s_load_dwordx2 s[4:5], s[0:1], 48
    s_load_dwordx2 s[20:21], s[0:1], 104
    """)
    code_prefetch(e, "k1", RO, "k3_fallback" if CPF == "all" else "k1_done")
    e(f"""
    v_cmp_gt_u32 vcc, {NX}, v0
    v_readfirstlane_b32 s3, v0
    v_lshlrev_b32 v{vA}, 4, v0
    v_lshlrev_b32 v{vB}, 3, v0
    s_mov_b64 s[36:37], vcc
    v_bfrev_b32 v{vC}, 2
    v_bfrev_b32 v{vD}, 2
    s_mov_b64 exec, vcc
    v_lshlrev_b32 v{vC}, 2, v0
    v_lshlrev_b32 v{vD}, 1, v0
    s_mov_b64 exec, -1
    v_and_b32 v{vL16}, 0x3f0, v{vA}
    v_mov_b32 v{vSix}, 6
    v_and_b32 v{vGA}, 0x1fff, v{vA}
    v_lshrrev_b32 v{T0}, 9, v0
    v_mul_u32_u24 v{T0}, {H1}, v{T0}
    v_add_u32 v{vLA}, v{vGA}, v{T0}
    v_sub_u32 v{vLB}, v{vGA}, v{T0}
    v_add_u32 v{vLB}, {H1}, v{vLB}
    v_bfe_u32 v{T0}, v0, 5, 1
    v_mul_u32_u24 v{vHalf}, {H1}, v{T0}
    v_mov_b32 v{vDir}, v{vL16}
    v_mov_b32 v{T0}, 0
    v_mov_b32 v{T0+1}, 0
    v_mov_b32 v{T0+2}, 0
    v_mov_b32 v{T0+3}, 0
    ds_write_b128 v{vL16}, {vr(T0,4)} offset:{K1_CNT}
    s_lshr_b32 s3, s3, 6
    s_mov_b32 s10, {T*4}
    s_mov_b32 s11, 0x00020000
    s_mov_b32 s14, {T*4}
    s_mov_b32 s15, 0x00020000
    s_mov_b32 s18, {T*2}
    s_mov_b32 s19, 0x00020000
    s_mov_b32 s22, 0
    s_mov_b32 s23, 0x00020000
    s_lshl_b32 s{sLo[0]}, s2, 14
    s_add_u32 s{sLo[1]}, s{sLo[0]}, {1<<22}
    s_add_u32 s{sLo[2]}, s{sLo[0]}, {2<<22}
    s_mul_i32 s{sLo[3]}, s2, {NX*4}
    s_add_u32 s{sLo[3]}, s{sLo[3]}, {MAINREC*4}
    s_lshl_b32 s{sI}, s2, 2
    s_lshr_b32 s{sHalf}, s3, 3
    s_mov_b32 s{sBad}, 0
    s_mov_b64 s[60:61], 0
    s_mov_b64 s[62:63], 0
    s_mov_b32 s{sK}, 0
    s_waitcnt lgkmcnt(0)
    s_load_dword s6, s[4:5], 0
    """)
    ws_align(e, 20)
    e(f"""
    s_mov_b32 s24, s20
    s_mov_b32 s25, s21
    s_mov_b32 s26, {WSUSE}
    s_mov_b32 s27, 0x00020000
    s_and_b32 s{sVt}, s2, 24
    s_or_b32 s{sVt}, s{sVt}, s{sWave}
    {f"s_mov_b32 s{sVt}, 1" if "noprobe" in EXP else ""}
    s_cmp_lg_u32 s{sVt}, 0
    s_cbranch_scc1 k1_nops
    s_lshr_b32 s38, s2, 5
    s_lshl_b32 s38, s38, 3
    s_and_b32 s31, s2, 7
    s_or_b32 s38, s38, s31
    s_lshl_b32 s39, s38, 21
    s_bfe_u32 s31, s38, 0x10003
    s_lshl_b32 s31, s31, 13
    s_add_u32 s39, s39, s31
    s_add_u32 s39, s39, {20*PG + PROBE}
    s_xor_b32 s31, s39, 0x2000
    buffer_store_dwordx2 {vr(T0,2)}, v{vB}, s[24:27], s39 offen sc1
    buffer_store_dwordx2 {vr(T0,2)}, v{vB}, s[24:27], s31 offen sc1
    k1_nops:
    """)
    e.vm.append("probe")
    for c in CP: e(f"v_mov_b32 v{c}, 0")
    def loads(r):
        e(f"s_lshr_b32 s32, s{sLo[r]}, 1")
        if r < 3:
            e.vmem(f"buffer_load_dwordx4 {vr(IN+4*r,4)}, v{vA}, s[8:11], s{sLo[r]} offen{LDPOL}", ("L",r))
            e.vmem(f"buffer_load_dwordx4 {vr(OUT+4*r,4)}, v{vA}, s[12:15], s{sLo[r]} offen{LDPOL}", ("L",r))
            e.vmem(f"buffer_load_dwordx2 {vr(ANG+2*r,2)}, v{vB}, s[16:19], s32 offen{LDPOL}", ("L",r))
            e(f"s_add_u32 s{sLo[r]}, s{sLo[r]}, {3<<22}")
        else:
            e.vmem(f"buffer_load_dword v{IN+12}, v{vC}, s[8:11], s{sLo[r]} offen{LDPOL}", ("L",r))
            e.vmem(f"buffer_load_dword v{OUT+12}, v{vC}, s[12:15], s{sLo[r]} offen{LDPOL}", ("L",r))
            e.vmem(f"buffer_load_ushort v{ANG+6}, v{vD}, s[16:19], s32 offen{LDPOL}", ("L",r))
            e(f"s_add_u32 s{sLo[r]}, s{sLo[r]}, {256*NX*4}")
    def store(r):
        e(f"s_add_u32 s31, s{60 + 2*(r&1)}, {r*16384}\ns_mov_b32 s22, s{61 + 2*(r&1)}")
        e.vmem(f"buffer_store_dwordx4 {vr(RO+4*r,4)}, v{vGA}, s[20:23], s31 offen{STPOL}", ("S", r))
    def at(pos):
        for op in K1S.get(pos, []):
            if op[0] == "W": e(f"s_waitcnt vmcnt({op[1:]})")
            else: (loads if op[0] == "L" else store)(int(op[1]))
    first = True
    for p in order[1:]:
        for op in K1S.get(p, []):
            if op[0] == "W" or (op[0] == "S" and first): continue
            (loads if op[0] == "L" else store)(int(op[1]))
            if first: e("s_barrier"); first = False
    if first: e("s_barrier")
    e(f"""
    s_waitcnt lgkmcnt(0)
    s_lshl_b32 s6, s6, 16
    v_mov_b32 v{vFreq}, s6
    """)
    def idx_ops(j):
        e(f"""
        v_lshrrev_b32 v{CA+j}, 4, v{IN+j}
        v_lshrrev_b32 v{D+j}, 8, v{IN+j}
        v_and_b32 v{CA+j}, 0x3fc, v{CA+j}
        v_bfi_b32 v{D+j}, 63, v{IN+j}, v{D+j}
        v_lshl_add_u32 v{D+j}, v{D+j}, 20, v{OUT+j}
        """)
    def cos_pairs(ps):
        t = {p: T0 + 2*i for i, p in enumerate(ps)}
        def each(f):
            for p in ps: e(f(p, t[p], t[p]+1))
        each(lambda p,a,b: f"v_lshlrev_b32 v{a}, 16, v{ANG+p}\nv_and_b32 v{b}, 0xffff0000, v{ANG+p}")
        each(lambda p,a,b: f"v_mul_f32 v{a}, v{vFreq}, v{a}\nv_mul_f32 v{b}, v{vFreq}, v{b}")
        each(lambda p,a,b: f"v_cvt_pk_bf16_f32 v{a}, 0, v{a}\nv_cvt_pk_bf16_f32 v{b}, 0, v{b}")
        each(lambda p,a,b: f"v_mul_f32 v{a}, 0.15915494, v{a}\nv_mul_f32 v{b}, 0.15915494, v{b}")
        each(lambda p,a,b: f"v_fract_f32 v{a}, v{a}\nv_fract_f32 v{b}, v{b}")
        each(lambda p,a,b: f"v_cos_f32 v{a}, v{a}\nv_cos_f32 v{b}, v{b}")
        e("s_nop 0")
        each(lambda p,a,b: f"v_cvt_pk_bf16_f32 v{a}, 0, v{a}\nv_cvt_pk_bf16_f32 v{b}, 0, v{b}")
        each(lambda p,a,b: f"v_cvt_pkrtz_f16_f32 v{CS+p}, v{a}, v{b}")
    def ro_reads():
        for r in range(5):
            e(f"ds_read_b128 {vr(RO+4*r,4)}, v{vLB if r & 1 else vLA} offset:{K1_BUF + r*BLK1}")
    def slot13(label, body):
        e(f"s_mov_b64 exec, s[36:37]\ns_cbranch_execz {label}")
        body()
        e(f"{label}:\ns_mov_b64 exec, -1")
    def do_probe():
        e(f"""
        s_cmp_lg_u32 s{sVt}, 0
        s_cbranch_scc1 k1_noprobe
        """)
        e.waitvm("probe")
        probe_time(e, 20, 39, 48, 44)
        e(f"""
        {f"s_mov_b32 s44, {FSEL}" if FSEL else ""}
        s_lshl_b32 s31, s38, 2
        s_add_u32 s31, s31, {CWORD}
        v_mov_b32 v{T0}, 0
        v_mov_b32 v{T0+1}, s44
        buffer_store_dword v{T0+1}, v{T0}, s[24:27], s31 offen sc1
        s_mov_b32 s{sVt}, 1
        k1_noprobe:
        """)
    if PPOS == "b": do_probe()
    lstamp_begin(e)
    vm_top = list(e.vm)
    e("s_branch k1_skipro\nk1_loop:")
    ro_reads()
    e("k1_skipro:")
    if any(op[0] == "S" for op in K1S.get("F", [])): e(W)
    at("F")
    e(f"""
    s_cmp_eq_u32 s{sK}, {TPW-1}
    s_cselect_b32 s10, 0, s10
    s_cselect_b32 s14, 0, s14
    s_cselect_b32 s18, 0, s18
    """)
    if PPOS == "a": do_probe()
    for r in range(3):
        e.waitvm(("L", r))
        if r == 0: lstamp(e, "ld0", sK, 0)
        for j in range(4*r, 4*r+4): idx_ops(j)
        if r == 0: e(W)
        for j in range(4*r, 4*r+4):
            e(f"ds_add_rtn_u32 v{RK+j}, v{CA+j}, v{vSix} offset:{K1_CNT}")
        cos_pairs([2*r, 2*r+1])
        at("PQR"[r])
    e.waitvm(("L", 3))
    def s13a():
        idx_ops(12)
        e(f"ds_add_rtn_u32 v{RK+12}, v{CA+12}, v{vSix} offset:{K1_CNT}")
        cos_pairs([6])
    slot13("k1_s13a", s13a)
    at("B")
    lstamp(e, "p1e", sK, 0)
    e("s_waitcnt lgkmcnt(0)\ns_barrier")
    lstamp(e, "b1", sK, 0)
    c = T0; cp = T0 + 4; sc = T0 + 8; tt = T0 + 9; b = RO; b2 = RO + 4
    e(f"ds_read_b128 {vr(c,4)}, v{vL16} offset:{K1_CNT}")
    at("C")
    e(W)
    for i in range(4): e(f"v_sub_u32 v{c+i}, v{c+i}, v{CP[i]}")
    for i in range(4): e(f"v_and_b32 v{cp+i}, 2, v{c+i}")
    for i in range(4): e(f"v_mad_u32_u24 v{cp+i}, v{cp+i}, 3, v{c+i}")
    e(f"v_add_u32 v{tt}, v{cp}, v{cp+1}\nv_add3_u32 v{tt}, v{tt}, v{cp+2}, v{cp+3}\nv_mov_b32 v{sc}, v{tt}")
    half_scan(e, sc)
    e(f"""
    v_sub_u32 v{b}, v{sc}, v{tt}
    v_readlane_b32 s33, v{sc}, 31
    v_readlane_b32 s47, v{sc}, 63
    v_add3_u32 v{b}, v{b}, 2, v{vHalf}
    v_add_u32 v{b+1}, v{b}, v{cp}
    v_add_u32 v{b+2}, v{b+1}, v{cp+1}
    v_add_u32 v{b+3}, v{b+2}, v{cp+2}
    """)
    for i in range(4): e(f"v_sub_u32 v{b2+i}, v{b+i}, v{CP[i]}")
    e(f"ds_write_b128 v{vL16}, {vr(b2,4)} offset:{K1_BASE}")
    for j in range(12):
        e(f"ds_read_b32 v{CA+j}, v{CA+j} offset:{K1_BASE}")
    slot13("k1_s13r", lambda: e(f"ds_read_b32 v{CA+12}, v{CA+12} offset:{K1_BASE}"))
    for i in range(4): e(f"v_add_u32 v{CP[i]}, v{CP[i]}, v{c+i}")
    e(f"s_cmp_lt_u32 s{sWave}, 14\ns_cbranch_scc1 k1_dutyB")
    def dA():
        for i in range(4):
            e(f"""
            v_sub_u32 v{b+i}, v{b+i}, v{vHalf}
            v_lshrrev_b32 v{tt}, 2, v{cp+i}
            v_lshrrev_b32 v{b+i}, 2, v{b+i}
            v_mul_u32_u24 v{tt}, 21846, v{tt}
            v_mul_u32_u24 v{b+i}, 21846, v{b+i}
            v_lshrrev_b32 v{tt}, 16, v{tt}
            v_lshrrev_b32 v{b+i}, 16, v{b+i}
            v_lshl_or_b32 v{b+i}, v{tt}, 13, v{b+i}
            """)
        e(f"ds_write_b128 v{vDir}, {vr(b,4)} offset:{K1_DIRB}\nv_add_u32 v{vDir}, 0x400, v{vDir}")
    duty(e, 15, sWave, "k1_dutyA", dA)
    def dB():
        e(f"""
        s_lshl_b32 s31, s2, 2
        s_add_u32 s31, s31, s{sK}
        s_mul_i32 s31, s31, 65
        v_lshl_add_u32 v{b2}, v{vL16}, 4, s31
        v_mov_b32 v{b2+1}, 0
        """)
        for i in range(4):
            e(f"""
            v_add_u32 v{tt}, {i*64}, v{b2}
            v_and_b32 v{tt}, 0x3fff, v{tt}
            v_or_b32 v{tt}, {63<<14}, v{tt}
            v_add_u32 v{sc}, v{b+i}, v{c+i}
            v_cmpx_ne_u32 vcc, v{cp+i}, v{c+i}
            ds_write_b32 v{sc}, v{tt} offset:{K1_BUF}
            ds_write_b16 v{sc}, v{b2+1} offset:{K1_BUF-2}
            s_mov_b64 exec, -1
            """)
    duty(e, 14, sWave, "k1_dutyB", dB)
    at("G")
    e(W)
    def scat(j):
        e(f"""
        v_add_u32 v{RK+j}, v{RK+j}, v{CA+j}
        v_and_b32 v{CA+j}, -4, v{RK+j}
        v_sub_u32 v{tt}, v{RK+j}, v{CA+j}
        v_lshl_add_u32 v{RK+j}, v{tt}, 1, v{RK+j}
        ds_write_b32 v{CA+j}, v{D+j} offset:{K1_BUF}
        ds_write_b16{'_d16_hi' if j & 1 else ''} v{RK+j}, v{CS+j//2} offset:{K1_BUF-2}
        """)
    for j in range(12):
        if j == 6: at("D")
        scat(j)
    slot13("k1_s13b", lambda: scat(12))
    at("E")
    e(f"""
    s_max_u32 s31, s33, s47
    s_cmp_gt_u32 s31, {H1}
    s_cselect_b32 s{sBad}, -1, s{sBad}
    s_cmp_eq_u32 s{sHalf}, 0
    s_cselect_b32 s61, s33, s47
    s_cselect_b32 s63, s47, s33
    """)
    img_base_s(e, 60, sI, sHalf, 25, IMG1, 0)
    assert all((x * 32897) >> 28 == x // BLK1 for x in range(0, H1 + 1, 12))
    e("s_xor_b32 s62, s60, 0x2000")
    for q in (61, 63):
        e(f"""
        s_min_u32 s{q}, s{q}, {H1}
        s_mul_i32 s31, s{q}, 32897
        s_lshr_b32 s31, s31, 28
        s_mul_i32 s31, s31, {16384 - BLK1}
        s_add_u32 s{q}, s{q}, s31
        s_add_u32 s{q}, s{q}, 127
        s_and_b32 s{q}, s{q}, 0xffffff80
        s_add_u32 s{q}, s{q}, s{q-1}
        """)
    e(f"""
    s_add_u32 s{sI}, s{sI}, 1
    s_add_u32 s{sK}, s{sK}, 1
    s_waitcnt lgkmcnt(0)
    s_barrier
    """)
    lstamp(e, "b2", sK, 0)
    def from_first_load(v):
        i = [n for n, t in enumerate(v) if t[0] == "L"]
        return v[i[0]:] if i else []
    assert from_first_load(e.vm) == from_first_load(vm_top), (e.vm, vm_top)
    e(f"s_cmp_lt_u32 s{sK}, {TPW}\ns_cbranch_scc1 k1_loop")
    lstamp_end(e, TPW)
    ro_reads()
    for r in range(5):
        e(f"s_waitcnt lgkmcnt({4-r})")
        if K1FW != "": e(f"s_waitcnt vmcnt({K1FW})")
        store(r)
    e(f"""
    s_cmp_lt_u32 s{sWave}, 12
    s_cbranch_scc1 k1_fin
    v_lshrrev_b32 v{T0+4}, 2, v{vA}
    v_and_b32 v{T0+4}, 0x3fc, v{T0+4}
    v_and_b32 v{T0+5}, 0xff0, v{vA}
    s_lshl_b32 s31, s2, 12
    s_add_u32 s31, s31, {DIR1}
    """)
    for k in range(TPW): e(f"ds_read_b32 v{T0+k}, v{T0+4} offset:{K1_DIRB + k*1024}")
    e(W)
    for k in range(TPW): e(f"v_or_b32 v{T0+k}, s{sBad}, v{T0+k}")
    e(f"""
    buffer_store_dwordx4 {vr(T0,4)}, v{T0+5}, s[24:27], s31 offen{STPOL}
    k1_fin:
    """)
    stamp_out(e, 0)
    e("k1_done:\ns_endpgm")
    return e.text(), NV, 96 if CPF else 64

def seg_ids(e, vWg, vK, vDirOff, t, sWave):
    e(f"""
    v_bfe_u32 v{t}, v0, 2, 4
    v_and_b32 v{vK}, 3, v0
    v_lshl_add_u32 v{vWg}, v{t}, 4, s{sWave}
    v_lshlrev_b32 v{t}, 12, v{vWg}
    v_lshl_add_u32 v{vDirOff}, v{vK}, 2, v{t}
    """)

def wmap_scan(e, vN, vF, vRk, sU):
    e(f"""
    v_cmp_lt_u32 vcc, 0, v{vN}
    v_mov_b32 v{vF}, v{vN}
    s_nop 0
    v_mbcnt_lo_u32_b32 v{vRk}, vcc_lo, 0
    v_mbcnt_hi_u32_b32 v{vRk}, vcc_hi, v{vRk}
    """)
    wave_scan(e, vF)
    e(f"s_nop 0\nv_readlane_b32 s{sU}, v{vF}, 63\nv_sub_u32 v{vF}, v{vF}, v{vN}")

def wmap_marks(e, pfx, vN, vF, vRk, t, sMapW, MAP):
    e(f"""
    v_add_u32 v{t}, v{vF}, v{vN}
    v_add_u32 v{t+1}, -1, v{t}
    v_lshrrev_b32 v{t+2}, 2, v{t+1}
    v_and_b32 v{t+2}, -16, v{t+2}
    v_lshrrev_b32 v{t+3}, 3, v{t+1}
    v_and_or_b32 v{t+2}, v{t+3}, 4, v{t+2}
    v_lshlrev_b32 v{t+1}, v{t+1}, 1
    v_add_u32 v{t+2}, s{sMapW}, v{t+2}
    ds_or_b32 v{t+2}, v{t+1} offset:{MAP}
    v_add_u32 v{t+1}, 63, v{vF}
    v_and_b32 v{t+1}, 0xffffffc0, v{t+1}
    {pfx}_rloop:
    v_cmpx_lt_u32 vcc, v{t+1}, v{t}
    s_cbranch_execz {pfx}_rdone
    v_lshrrev_b32 v{t+2}, 2, v{t+1}
    v_add_u32 v{t+2}, s{sMapW}, v{t+2}
    ds_write_b32 v{t+2}, v{vRk} offset:{MAP+8}
    v_add_u32 v{t+1}, 64, v{t+1}
    s_branch {pfx}_rloop
    {pfx}_rdone:
    s_mov_b64 exec, -1
    """)

def sel_wT(e, dst, sW, vSel, vHi, t):
    for p in range(2):
        for k in range(2):
            r = sW + 4*p + 2*k
            e(f"v_mov_b32 v{t+k}, s{r}\nv_bfi_b32 v{t+k}, v{vHi}, s{r+1}, v{t+k}")
        e(f"v_perm_b32 v{dst+p}, v{t+1}, v{t}, v{vSel}")

def sel_consts(e, vSel, vHi):
    e(f"""
    v_bfe_i32 v{vSel}, v0, 0, 1
    v_bfe_i32 v{vHi}, v0, 1, 1
    v_and_b32 v{vSel}, 0x02020202, v{vSel}
    v_add_u32 v{vSel}, 0x05040100, v{vSel}
    """)

def bucket_id(e, sB):
    e(f"""
    s_and_b32 s{sB}, s2, 7
    s_lshl_b32 s{sB}, s{sB}, 5
    s_lshr_b32 s31, s2, 3
    s_add_u32 s{sB}, s{sB}, s31
    """)

def bucket_flip(e, sB, srd, vt, vL16):
    e(f"""
    v_lshrrev_b32 v{vt}, 2, v{vL16}
    s_mov_b32 s31, {CWORD}
    buffer_load_dword v{vt}, v{vt}, {sr(srd,4)}, s31 offen
    s_waitcnt vmcnt(0)
    v_cmp_eq_u32 vcc, 1, v{vt}
    s_bcnt1_i32_b64 s31, vcc
    s_cmp_gt_u32 s31, 32
    s_cselect_b32 s31, 128, 0
    s_xor_b32 s{sB}, s{sB}, s31
    """)

from gb6k2 import *
from gb6k3 import *

if __name__ == "__main__":
    which = sys.argv[1] if len(sys.argv) > 1 else "123"
    g = sys.modules[__name__]
    ks = []
    if "1" in which: ks.append(("k1_kernel", gen_k1(), 256, 1024, K1_LDS))
    if "2" in which: ks.append(("k2_kernel", gen_k2(g), 256, 1024, k2_lds(g)))
    if "3" in which: ks.append(("k3_kernel", gen_k3(g), 256, 1024, K3_LDS))
    emit(ks)
```
